```python
import torch

def _softmax(x, axis=-1):
    return torch.softmax(x, dim=axis)
def _gelu(x):
    return torch.nn.functional.gelu(x, approximate="tanh")
def _silu(x):
    return torch.nn.functional.silu(x)
def _sigmoid(x):
    return torch.sigmoid(x)
def _layernorm(x, axis=-1, eps=1e-5):
    m = x.mean(dim=axis, keepdim=True)
    v = x.var(dim=axis, keepdim=True, unbiased=False)
    return (x - m) / torch.sqrt(v + eps)
def _scatter_add(tgt, idx, src, axis=0):
    return tgt.clone().index_add_(axis, idx, src)
def _segment_sum(src, seg, n):
    out = torch.zeros((n,) + src.shape[1:], dtype=src.dtype)
    return out.index_add_(0, seg, src)
def _pad(x, pw):
    flat = tuple(v for pair in reversed(pw) for v in pair)
    return torch.nn.functional.pad(x, flat)

kernel_name = 'recurrent_scan__sliding_block_cached__mixer_token_mlp__decode'

def setup_inputs():

    _w = (lambda a: (lambda t: t.to(torch.bfloat16) if t.is_floating_point() else t)(torch.as_tensor(a)))
    def _A_setup():
        B, Sq, D = 4, 1, 512
        Hq, Hkv, Sk, Dh = 32, 8, 4096, 128
        assert Hq % Hkv == 0, (Hq, Hkv)
        return {
            "x": _w((lambda *s: torch.randn(*s, dtype=torch.bfloat16) * 0.05)(B, Sq, D)),
            "k_cache": _w((lambda *s: torch.randn(*s, dtype=torch.bfloat16) * 3.2)(B, Hkv, Sk, Dh)),
            "v_cache": _w((lambda *s: torch.randn(*s, dtype=torch.bfloat16) * 3.2)(B, Hkv, Sk, Dh)),
            "wq": _w((lambda *s: torch.randn(*s, dtype=torch.bfloat16) * 3.2)(D, Hq * Dh) * (D ** -0.5)),
            "wo": _w((lambda *s: torch.randn(*s, dtype=torch.bfloat16) * 3.2)(Hq * Dh, D) * ((Hq * Dh) ** -0.5)),
        }
    _A_in = _A_setup()

    def _B_setup():
        B, S, D, F = 4, 1, 512, 1792
        return {
            "x": _w((lambda *s: torch.randn(*s, dtype=torch.bfloat16) * 0.05)(B, S, D)),
            "w1": _w((lambda *s: torch.randn(*s, dtype=torch.bfloat16) * 3.2)(S, F) * (S ** -0.5)),
            "b1": _w((lambda *s: torch.randn(*s, dtype=torch.bfloat16) * 3.2)(F) * 0.02),
            "w2": _w((lambda *s: torch.randn(*s, dtype=torch.bfloat16) * 0.4)(F, S) * (F ** -0.5)),
            "b2": _w((lambda *s: torch.randn(*s, dtype=torch.bfloat16) * 0.4)(S) * 0.02),
        }
    _B_in = _B_setup()

    return {
        "A_x": _A_in["x"],
        "A_k_cache": _A_in["k_cache"],
        "A_v_cache": _A_in["v_cache"],
        "A_wq": _A_in["wq"],
        "A_wo": _A_in["wo"],
        "B_x": _B_in["x"],
        "B_w1": _B_in["w1"],
        "B_b1": _B_in["b1"],
        "B_w2": _B_in["w2"],
        "B_b2": _B_in["b2"],
    }

def reference(A_x, A_k_cache, A_v_cache, A_wq, A_wo, B_x, B_w1, B_b1, B_w2, B_b2):
    def _A_ref(x, k_cache, v_cache, wq, wo):
        B, Sq, D = x.shape
        Hq, Dh = 32, 128
        Hkv, Sk = k_cache.shape[1], k_cache.shape[2]
        W = min(4096, max(256, Sk // 4))
        rep = Hq // Hkv
        q = (lambda x, *d: x.permute(*d))((x @ wq).reshape(B, Sq, Hq, Dh), 0, 2, 1, 3)
        k = (lambda x, n, axis: torch.repeat_interleave(x, n, dim=axis))(k_cache[:, :, Sk - W:, :], rep, axis=1)
        v = (lambda x, n, axis: torch.repeat_interleave(x, n, dim=axis))(v_cache[:, :, Sk - W:, :], rep, axis=1)
        scores = torch.einsum("bhqd,bhkd->bhqk", q, k) * (Dh ** -0.5)
        p = _softmax(scores, axis=-1)
        o = torch.einsum("bhqk,bhkd->bhqd", p, v)
        return (lambda x, *d: x.permute(*d))(o, 0, 2, 1, 3).reshape(B, Sq, Hq * Dh) @ wo

    def _B_ref(x, w1, b1, w2, b2):
        B, S, D = x.shape
        h = _layernorm(x, axis=-1)
        u = torch.einsum("bsd,sf->bdf", h, w1) + b1
        u = _gelu(u)
        y = torch.einsum("bdf,fs->bds", u, w2) + b2
        return (lambda x, *d: x.permute(*d))(y, 0, 2, 1)

    x = A_x
    xn = _layernorm(x, axis=-1)
    s = _A_ref(xn, A_k_cache, A_v_cache, A_wq, A_wo)
    g = _silu(_B_ref(xn, B_w1, B_b1, B_w2, B_b2))
    return x + s * g
```

```python
NAME = "recurrent_scan__sliding_block_cached__mixer_token_mlp__decode"
HDR = open("cdna_kernels/" + NAME + ".s.ref").read().split("; Override launch")[0]

class Asm:
    def __init__(self):
        self.l = []
    def __call__(self, s):
        for line in s.strip("\n").split("\n"):
            self.l.append(line if line.rstrip().endswith(":") and not line.startswith(" ") else "    " + line.strip())
    def text(self):
        return "\n".join(self.l) + "\n"

def wrap(body, grid, block, lds, vgpr, sgpr=102, accum=None):
    if accum is None:
        accum = (vgpr + 3) // 4 * 4
    return (HDR + f"; @launch grid=({grid},1,1) block=({block},1,1) lds={lds}\n"
        + '.amdgcn_target "amdgcn-amd-amdhsa--gfx950"\n.text\n'
        + f".globl {NAME}_kernel\n.p2align 8\n.type {NAME}_kernel,@function\n{NAME}_kernel:\n"
        + body
        + f'.section .rodata,"a"\n.p2align 6\n.amdhsa_kernel {NAME}_kernel\n'
        + f"  .amdhsa_next_free_vgpr {vgpr}\n  .amdhsa_next_free_sgpr {sgpr}\n  .amdhsa_accum_offset {accum}\n"
        + "  .amdhsa_group_segment_fixed_size 0\n  .amdhsa_kernarg_size 104\n  .amdhsa_user_sgpr_count 2\n"
        + "  .amdhsa_user_sgpr_kernarg_segment_ptr 1\n  .amdhsa_system_sgpr_workgroup_id_x 1\n.end_amdhsa_kernel\n")
```

```python
import sys, math, struct
from asmlib import *

def f2u(x): return struct.unpack("<I", struct.pack("<f", x))[0]
LOG2E = 1.4426950408889634
C0 = -2.0 * LOG2E * math.sqrt(2.0 / math.pi)
C1 = C0 * 0.044715
SCALE = 128 ** -0.5

XN = 0x0000; HH = 0x1000; QP = 0x2000; QQ = 0x4000; OP = 0x4400; ML = 0x6400; WP = 0x6800; GG = 0x8800; CNT = 0x8900
LDS_BYTES = 0x8A00
QG = 0x1000; OG = 0x80000; FG = 0x100000

def gen(stamps=False, W=6, NT=" nt", lds=84000, spin=200000, slp=1):
    a = Asm()
    def stamp(i):
        if stamps: a(f"s_memrealtime s[{60+2*i}:{61+2*i}]")
    def flush_stamps(idx, only_wave=None):
        if not stamps: return
        a("s_waitcnt lgkmcnt(0)\ns_mov_b64 exec, 1\ns_lshl_b32 s3, s2, 7\ns_add_u32 s48, s28, s3\ns_addc_u32 s49, s29, 0\ns_add_u32 s48, s48, 0x8000000\ns_addc_u32 s49, s49, 0\nv_mov_b32 v0, 0")
        for i in idx:
            a(f"v_mov_b32 v2, s{60+2*i}\nv_mov_b32 v3, s{61+2*i}\nglobal_store_dwordx2 v0, v[2:3], s[48:49] offset:{8*i}")
    def allreduce(v, t, op="add"):
        for r in (8, 4, 2, 1):
            a(f"s_nop 1\nv_{op}_f32_dpp v{v}, v{v}, v{v} row_ror:{r} row_mask:0xf bank_mask:0xf")
        for sw in (16, 32):
            a(f"v_mov_b32 v{t}, v{v}\ns_nop 1\nv_permlane{sw}_swap_b32 v{v}, v{t}\ns_nop 1\nv_{op}_f32 v{v}, v{v}, v{t}")
    def reduce8(A, B):
        a("s_nop 1")
        for r in range(4): a(f"v_permlane32_swap_b32 v{A+r}, v{B+r}")
        a("s_nop 1")
        for r in range(4): a(f"v_add_f32 v{A+r}, v{A+r}, v{B+r}")
        a("s_nop 1")
        a(f"v_permlane16_swap_b32 v{A}, v{A+2}\nv_permlane16_swap_b32 v{A+1}, v{A+3}\ns_nop 1")
        a(f"v_add_f32 v{A}, v{A}, v{A+2}\nv_add_f32 v{A+1}, v{A+1}, v{A+3}")
        for r in (8, 4, 2, 1):
            a(f"s_nop 0\nv_add_f32_dpp v{A}, v{A}, v{A} row_ror:{r} row_mask:0xf bank_mask:0xf\nv_add_f32_dpp v{A+1}, v{A+1}, v{A+1} row_ror:{r} row_mask:0xf bank_mask:0xf")
        a(f"s_nop 1\nv_mov_b32_dpp v{A}, v{A+1} quad_perm:[0,1,2,3] row_mask:0xf bank_mask:0xf bound_ctrl:0".replace("v_mov_b32_dpp", "; v_mov_b32_dpp"))
        a(f"s_mov_b32 vcc_lo, 0xAAAAAAAA\ns_mov_b32 vcc_hi, 0xAAAAAAAA\nv_cndmask_b32 v{A}, v{A}, v{A+1}, vcc")
    def pack24(v):
        for r in range(4): a(f"v_add_u32 v{v+r}, 0x80, v{v+r}")
        for r in range(4): a(f"v_mov_b32_sdwa v{v+r}, s30 dst_sel:BYTE_0 dst_unused:UNUSED_PRESERVE src0_sel:BYTE_{r}")
        a("s_nop 0")
    def tag24(v, t, u):
        a(f"v_perm_b32 v{t}, v{v+1}, v{v}, s42\nv_perm_b32 v{u}, v{v+3}, v{v+2}, s43\nv_or_b32 v{t}, v{t}, v{u}")
    def bfround(d, s):
        a(f"v_cvt_pk_bf16_f32 v{d}, v{s}, v{s}\nv_and_b32 v{d}, 0xffff0000, v{d}")

    stamp(0)
    a(f"""
s_cmp_ge_u32 s2, 256
s_cbranch_scc1 L_end
s_load_dwordx16 s[4:19], s[0:1], 0
s_load_dwordx8 s[20:27], s[0:1], 64
s_load_dwordx2 s[28:29], s[0:1], 96
v_lshrrev_b32 v1, 6, v0
v_and_b32 v0, 63, v0
s_and_b32 s32, s2, 7
v_readfirstlane_b32 s36, v1
s_lshr_b32 s33, s2, 3
s_lshr_b32 s34, s2, 6
s_and_b32 s35, s33, 7
v_and_b32 v1, 15, v0
v_lshrrev_b32 v6, 4, v0
s_mov_b32 s40, 0x05040100
s_mov_b32 s41, 0x07060302
s_mov_b32 s42, 0x0c0c0400
s_mov_b32 s43, 0x04000c0c
s_cmp_ge_u32 s36, 4
s_cbranch_scc1 L_aux
""")
    a(f"""
s_lshl_b32 s37, s36, 5
v_lshrrev_b32 v7, 3, v1
v_lshlrev_b32 v7, 4, v7
v_lshl_add_u32 v7, v6, 2, v7
v_add_u32 v7, s37, v7
v_and_b32 v8, 7, v1
v_lshlrev_b32 v8, 4, v8
v_lshl_add_u32 v2, v7, 13, v8
s_lshl_b32 s38, s34, 20
s_lshl_b32 s39, s32, 10
s_add_u32 s38, s38, s39
s_lshl_b32 s39, s35, 7
s_add_u32 s38, s38, s39
s_lshl_b32 s44, s34, 3
s_add_u32 s44, s44, s32
s_lshl_b32 s44, s44, 20
s_lshl_b32 s45, s35, 15
s_add_u32 s44, s44, s45
s_lshl_b32 s45, s36, 13
s_add_u32 s44, s44, s45
s_add_u32 s44, s44, 0xC1000
v_lshlrev_b32 v3, 8, v1
v_lshl_add_u32 v3, v6, 4, v3
v_lshlrev_b32 v4, 4, v1
v_lshl_add_u32 v4, v6, 10, v4
s_waitcnt lgkmcnt(0)
s_load_dword s30, s[28:29], 0
s_add_u32 s10, s10, s38
s_addc_u32 s11, s11, 0
""")
    loads = []
    for i in range(4):
        loads.append(f"global_load_dwordx4 v[{16+4*i}:{19+4*i}], v2, s[10:11]{NT}" + ("\nv_add_u32 v2, 0x2000, v2" if i < 3 else ""))
    for t in range(2):
        for s in range(4):
            r = 32 + (t*4+s)*4
            loads.append(f"global_load_dwordx4 v[{r}:{r+3}], v3, s[6:7] offset:{t*4096-4096+s*64}{NT}")
    for t in range(2):
        for s in range(4):
            r = 64 + (t*4+s)*4
            loads.append(f"global_load_dwordx4 v[{r}:{r+3}], v4, s[8:9] offset:{t*4096-4096+s*256}{NT}")
    for i in range(4):
        loads.append(f"global_load_dwordx4 v[{96+4*i}:{99+4*i}], v5, s[12:13]{NT}" + ("\nv_add_u32 v5, 0x2000, v5" if i < 3 else ""))
    st = dict(issued=0, done=0)
    def issue_upto(n):
        while st["issued"] < min(n, 24):
            a(loads[st["issued"]]); st["issued"] += 1
    def wait_done(n):
        if n > st["done"]:
            a(f"s_waitcnt vmcnt({st['issued']-n})"); st["done"] = n
    issue_upto(4)
    a(f"""
s_add_u32 s6, s6, s44
s_addc_u32 s7, s7, 0
s_add_u32 s8, s8, s44
s_addc_u32 s9, s9, 0
""")
    issue_upto(W)
    a(f"""
s_lshr_b32 s46, s33, 2
s_and_b32 s47, s33, 3
s_lshl_b32 s38, s32, 3
s_add_u32 s38, s38, s46
s_lshl_b32 s38, s38, 16
s_lshl_b32 s39, s47, 8
s_add_u32 s38, s38, s39
s_lshr_b32 s39, s36, 1
s_lshl_b32 s39, s39, 15
s_add_u32 s38, s38, s39
s_and_b32 s39, s36, 1
s_lshl_b32 s39, s39, 12
s_add_u32 s38, s38, s39
s_add_u32 s12, s12, s38
s_addc_u32 s13, s13, 0
v_mov_b32 v5, v4
v_and_b32 v9, 3, v1
v_lshlrev_b32 v10, 10, v9
v_bfe_u32 v11, v1, 2, 1
v_lshl_add_u32 v10, v11, 5, v10
v_lshl_add_u32 v10, v6, 3, v10
s_lshl_b32 s38, s34, 8
s_lshl_b32 s39, s36, 6
s_add_u32 s38, s38, s39
v_add_u32 v10, s38, v10
v_lshrrev_b32 v11, 1, v6
v_lshlrev_b32 v11, 10, v11
v_lshl_add_u32 v11, v9, 8, v11
v_and_b32 v12, 1, v6
v_lshl_add_u32 v11, v12, 7, v11
s_lshl_b32 s38, s36, 11
v_add_u32 v11, s38, v11
""")
    wait_done(2); issue_upto(W + 2)
    wait_done(4); issue_upto(W + 4)
    stamp(1)
    for t in range(8):
        j = t // 2; sel = "s40" if t % 2 == 0 else "s41"
        a(f"v_perm_b32 v{112+2*t}, v{20+j}, v{16+j}, {sel}\nv_perm_b32 v{113+2*t}, v{28+j}, v{24+j}, {sel}")
    a("s_barrier")
    stamp(2)
    a(f"ds_read_b64 v[8:9], v10 offset:{XN}\ns_waitcnt lgkmcnt(0)")
    for t in range(8):
        a(f"v_mfma_f32_16x16x16_bf16 v[{128+4*t}:{131+4*t}], v[{112+2*t}:{113+2*t}], v[8:9], 0")
    a(f"""
s_mul_i32 s30, s30, 0x9E3779B1
s_add_u32 s30, s30, 0x7F4A7C15
s_mov_b32 exec_lo, 0x000F000F
s_mov_b32 exec_hi, 0x00F000F0
""")
    for t in range(8):
        if t == 4: a("s_nop 3")
        a(f"ds_write_b128 v11, v[{128+4*t}:{131+4*t}] offset:{QP+16*t}")
    a(f"""
s_mov_b64 exec, 1
v_mov_b32 v12, {CNT}
v_mov_b32 v13, 1
s_waitcnt lgkmcnt(0)
ds_add_rtn_u32 v13, v12, v13
s_mov_b64 exec, -1
v_lshlrev_b32 v12, 4, v0
s_waitcnt lgkmcnt(0)
v_readfirstlane_b32 s38, v13
s_cmp_lg_u32 s38, 3
s_cbranch_scc1 L_noqpub
""")
    for s in range(8):
        a(f"ds_read_b128 v[{128+4*s}:{131+4*s}], v12 offset:{QP+1024*s}")
    a(f"""
s_lshl_b32 s38, s32, 15
s_lshl_b32 s39, s33, 8
s_add_u32 s38, s38, s39
s_add_u32 s38, s38, {QG}
s_add_u32 s50, s28, s38
s_addc_u32 s51, s29, 0
v_lshlrev_b32 v12, 4, v1
v_lshl_add_u32 v12, v6, 13, v12
""")
    for s in range(4):
        a(f"s_waitcnt lgkmcnt({6-2*s})")
        a(f"v_pk_add_f32 v[{128+8*s}:{129+8*s}], v[{128+8*s}:{129+8*s}], v[{132+8*s}:{133+8*s}]\nv_pk_add_f32 v[{130+8*s}:{131+8*s}], v[{130+8*s}:{131+8*s}], v[{134+8*s}:{135+8*s}]")
    for (x, y) in ((128, 136), (144, 152), (128, 144)):
        a(f"v_pk_add_f32 v[{x}:{x+1}], v[{x}:{x+1}], v[{y}:{y+1}]\nv_pk_add_f32 v[{x+2}:{x+3}], v[{x+2}:{x+3}], v[{y+2}:{y+3}]")
    pack24(128)
    a("global_store_dwordx4 v12, v[128:131], s[50:51] sc1")
    a("L_noqpub:")
    stamp(3)
    d = 4
    while st["issued"] < 24:
        d += 2
        wait_done(d); issue_upto(W + d)
    stamp(4)
    a(f"""
v_and_b32 v9, 3, v1
v_lshlrev_b32 v10, 8, v9
v_lshl_add_u32 v10, v6, 4, v10
v_lshlrev_b32 v11, 9, v9
v_lshl_add_u32 v11, v6, 7, v11
s_lshl_b32 s38, s36, 11
v_add_u32 v11, s38, v11
s_lshl_b32 s38, s36, 3
v_lshlrev_b32 v12, 5, v9
v_add_u32 v12, s38, v12
""")
    wait_done(max(st["done"], 16))
    for t in range(8):
        j = t // 2; sel = "s40" if t % 2 == 0 else "s41"
        a(f"v_perm_b32 v{160+4*t}, v{68+j}, v{64+j}, {sel}\nv_perm_b32 v{161+4*t}, v{76+j}, v{72+j}, {sel}")
    a("s_barrier")
    stamp(5)
    for s in range(4):
        a(f"ds_read_b128 v[{112+4*s}:{115+4*s}], v10 offset:{QQ+64*s}")
    for s in range(4):
        a(f"s_waitcnt lgkmcnt({3-s})")
        for t in range(2):
            r = 32 + (t*4+s)*4
            c = "0" if s == 0 else f"v[{128+4*t}:{131+4*t}]"
            a(f"v_mfma_f32_16x16x32_bf16 v[{128+4*t}:{131+4*t}], v[{r}:{r+3}], v[{112+4*s}:{115+4*s}], {c}")
    a(f"s_mov_b32 s38, {f2u(SCALE):#x}\ns_mov_b32 s39, {f2u(LOG2E):#x}\ns_nop 5")
    for p in range(4): a(f"v_cvt_pk_bf16_f32 v{136+p}, v{128+2*p}, v{129+2*p}")
    for p in range(4): a(f"v_lshlrev_b32 v{128+2*p}, 16, v{136+p}\nv_and_b32 v{129+2*p}, 0xffff0000, v{136+p}")
    for p in range(4): a(f"v_pk_mul_f32 v[{128+2*p}:{129+2*p}], v[{128+2*p}:{129+2*p}], s[38:39] op_sel_hi:[1,0]")
    for p in range(4): a(f"v_cvt_pk_bf16_f32 v{136+p}, v{128+2*p}, v{129+2*p}")
    for p in range(4): a(f"v_lshlrev_b32 v{128+2*p}, 16, v{136+p}\nv_and_b32 v{129+2*p}, 0xffff0000, v{136+p}")
    a("""
v_max3_f32 v140, v128, v129, v130
v_max3_f32 v141, v131, v132, v133
v_max3_f32 v140, v140, v134, v135
v_max_f32 v140, v140, v141
""")
    for sw in (16, 32):
        a(f"v_mov_b32 v141, v140\ns_nop 1\nv_permlane{sw}_swap_b32 v140, v141\ns_nop 1\nv_max_f32 v140, v140, v141")
    a("v_mul_f32 v140, s39, v140")
    for p in range(8): a(f"v_fma_f32 v{128+p}, v{128+p}, s39, -v140")
    for p in range(8): a(f"v_exp_f32 v{128+p}, v{128+p}")
    a("s_nop 0")
    for p in range(4): a(f"v_cvt_pk_bf16_f32 v{136+p}, v{128+2*p}, v{129+2*p}")
    a("""
v_pk_add_f32 v[128:129], v[128:129], v[130:131]
v_pk_add_f32 v[132:133], v[132:133], v[134:135]
v_pk_add_f32 v[128:129], v[128:129], v[132:133]
v_add_f32 v141, v128, v129
""")
    wait_done(20)
    for t in range(8):
        j = t // 2; sel = "s40" if t % 2 == 0 else "s41"
        a(f"v_perm_b32 v{162+4*t}, v{84+j}, v{80+j}, {sel}\nv_perm_b32 v{163+4*t}, v{92+j}, v{88+j}, {sel}")
        if t >= 1:
            a(f"v_mfma_f32_16x16x32_bf16 v[{32+4*(t-1)}:{35+4*(t-1)}], v[{160+4*(t-1)}:{163+4*(t-1)}], v[136:139], 0")
    a("v_mov_b32 v142, v141\ns_nop 0")
    a(f"v_mfma_f32_16x16x32_bf16 v[60:63], v[188:191], v[136:139], 0")
    a("v_permlane16_swap_b32 v141, v142\ns_nop 1\nv_add_f32 v141, v141, v142\nv_mov_b32 v142, v141\ns_nop 1\nv_permlane32_swap_b32 v141, v142\ns_nop 1\nv_add_f32 v141, v141, v142")
    a("s_mov_b32 exec_lo, 0x000F000F\ns_mov_b32 exec_hi, 0x000F000F")
    for t in range(8):
        a(f"ds_write_b128 v11, v[{32+4*t}:{35+4*t}] offset:{OP+16*t}")
    a(f"s_mov_b64 exec, 15\nds_write_b64 v12, v[140:141] offset:{ML}\ns_mov_b64 exec, -1")
    a(f"""
v_lshlrev_b32 v10, 14, v9
v_lshrrev_b32 v13, 2, v1
v_lshl_add_u32 v10, v13, 12, v10
v_lshl_add_u32 v10, v6, 4, v10
s_lshl_b32 s38, s32, 16
s_lshl_b32 s39, s46, 8
s_add_u32 s38, s38, s39
s_lshl_b32 s39, s36, 6
s_add_u32 s38, s38, s39
s_add_u32 s38, s38, {OG}
s_add_u32 s50, s28, s38
s_addc_u32 s51, s29, 0
s_waitcnt lgkmcnt(0)
""")
    stamp(6)
    a("s_barrier")
    a("s_waitcnt vmcnt(0)")
    for t in range(8):
        j = t // 2; sel = "s40" if t % 2 == 0 else "s41"
        a(f"v_perm_b32 v{112+2*t}, v{100+j}, v{96+j}, {sel}\nv_perm_b32 v{113+2*t}, v{108+j}, v{104+j}, {sel}")
    a(f"""
s_lshl_b32 s38, s36, 11
v_lshlrev_b32 v11, 7, v1
v_add_u32 v11, s38, v11
s_mov_b32 s38, {spin}
L_opoll:
global_load_dwordx4 v[16:19], v10, s[50:51] sc1
global_load_dwordx4 v[20:23], v10, s[50:51] offset:2048 sc1
s_waitcnt vmcnt(0)
v_cmp_ne_u32 vcc, s30, v19
v_cmp_ne_u32 s[52:53], s30, v23
s_or_b64 exec, vcc, s[52:53]
s_cbranch_execz L_odone
s_sub_u32 s38, s38, 1
s_cbranch_scc0 L_opoll
L_odone:
s_mov_b64 exec, -1
""")
    stamp(7)
    a(f"""
v_max_f32 v24, v18, v22
v_lshlrev_b32 v26, 16, v16
v_and_b32 v27, 0xffff0000, v16
v_max_f32_dpp v24, v24, v24 row_ror:4 row_mask:0xf bank_mask:0xf
v_lshlrev_b32 v28, 16, v17
v_and_b32 v29, 0xffff0000, v17
v_max_f32_dpp v24, v24, v24 row_ror:8 row_mask:0xf bank_mask:0xf
v_lshlrev_b32 v30, 16, v20
v_and_b32 v31, 0xffff0000, v20
v_sub_f32 v18, v18, v24
v_sub_f32 v22, v22, v24
v_exp_f32 v18, v18
v_exp_f32 v22, v22
v_lshlrev_b32 v32, 16, v21
v_and_b32 v33, 0xffff0000, v21
v_add_f32 v24, v18, v22
v_pk_mul_f32 v[26:27], v[26:27], v[18:19] op_sel_hi:[1,0]
v_pk_mul_f32 v[28:29], v[28:29], v[18:19] op_sel_hi:[1,0]
v_add_f32_dpp v24, v24, v24 row_ror:4 row_mask:0xf bank_mask:0xf
v_pk_fma_f32 v[26:27], v[30:31], v[22:23], v[26:27] op_sel_hi:[1,0,1]
v_pk_fma_f32 v[28:29], v[32:33], v[22:23], v[28:29] op_sel_hi:[1,0,1]
v_add_f32_dpp v24, v24, v24 row_ror:8 row_mask:0xf bank_mask:0xf
s_nop 0
""")
    a("v_rcp_f32 v24, v24")
    for r in (4, 8):
        for e in range(4): a(f"v_add_f32_dpp v{26+e}, v{26+e}, v{26+e} row_ror:{r} row_mask:0xf bank_mask:0xf")
    a("""
v_pk_mul_f32 v[26:27], v[26:27], v[24:25] op_sel_hi:[1,0]
v_pk_mul_f32 v[28:29], v[28:29], v[24:25] op_sel_hi:[1,0]
v_cvt_pk_bf16_f32 v8, v26, v27
v_cvt_pk_bf16_f32 v9, v28, v29
s_nop 1
""")
    for t in range(8):
        a(f"v_mfma_f32_16x16x16_bf16 v[{128+4*t}:{131+4*t}], v[8:9], v[{112+2*t}:{113+2*t}], 0")
    a("s_mov_b64 exec, 0xffff\ns_nop 1")
    for t in range(8):
        if t == 4: a("s_nop 3")
        a(f"ds_write_b128 v11, v[{128+4*t}:{131+4*t}] offset:{WP+16*t}")
    a("s_waitcnt lgkmcnt(0)")
    stamp(8)
    a("s_barrier")
    if stamps:
        a("s_cmp_lg_u32 s36, 0\ns_cbranch_scc1 L_end")
        flush_stamps(range(0, 9))
    a("s_endpgm")

    a(f"""L_aux:
s_sub_u32 s37, s36, 4
s_lshl_b32 s38, s37, 10
v_lshlrev_b32 v2, 4, v0
v_add_u32 v2, s38, v2
v_mov_b32 v12, {CNT}
v_mov_b32 v13, 0
""")
    for r in range(20, 32): a(f"v_mov_b32 v{r}, 0")
    a(f"""
v_cmp_gt_u32 vcc, 0xE00, v2
s_waitcnt lgkmcnt(0)
global_load_dwordx4 v[16:19], v2, s[4:5]
s_load_dword s30, s[28:29], 0
s_load_dword s31, s[22:23], 0
s_mov_b64 exec, vcc
global_load_dwordx4 v[20:23], v2, s[16:17]
global_load_dwordx4 v[24:27], v2, s[18:19]
global_load_dwordx4 v[28:31], v2, s[20:21]
s_mov_b64 exec, -1
ds_write_b32 v12, v13
v_and_b32 v3, 1, v6
v_and_b32 v4, 1, v0
v_lshl_add_u32 v3, v3, 1, v4
v_lshlrev_b32 v3, 10, v3
v_lshrrev_b32 v4, 5, v0
v_lshl_add_u32 v3, v4, 1, v3
s_lshl_b32 s38, s2, 2
v_add_u32 v3, s38, v3
global_load_ushort v5, v3, s[4:5]
s_mov_b32 s44, {f2u(1.0/512):#x}
s_mov_b32 s45, {f2u(1e-5):#x}
s_waitcnt vmcnt(4)
""")
    def layernorm(dst):
        for p in range(4): a(f"v_lshlrev_b32 v{32+2*p}, 16, v{16+p}\nv_and_b32 v{33+2*p}, 0xffff0000, v{16+p}")
        a("""
v_pk_add_f32 v[40:41], v[32:33], v[34:35]
v_pk_add_f32 v[42:43], v[36:37], v[38:39]
v_pk_add_f32 v[40:41], v[40:41], v[42:43]
v_add_f32 v40, v40, v41
""")
        allreduce(40, 41)
        a("v_mul_f32 v40, s44, v40")
        for p in range(4): a(f"v_pk_add_f32 v[{42+2*p}:{43+2*p}], v[{32+2*p}:{33+2*p}], v[40:41] op_sel_hi:[1,0] neg_lo:[0,1] neg_hi:[0,1]")
        a("""
v_pk_mul_f32 v[42:43], v[42:43], v[42:43]
v_pk_fma_f32 v[42:43], v[44:45], v[44:45], v[42:43]
v_pk_fma_f32 v[42:43], v[46:47], v[46:47], v[42:43]
v_pk_fma_f32 v[42:43], v[48:49], v[48:49], v[42:43]
v_add_f32 v42, v42, v43
""")
        bfround(40, 40)
        allreduce(42, 43)
        a("v_mul_f32 v42, s44, v42")
        bfround(42, 42)
        a("v_add_f32 v42, s45, v42")
        bfround(42, 42)
        a("v_sqrt_f32 v42, v42")
        for p in range(4): a(f"v_pk_add_f32 v[{32+2*p}:{33+2*p}], v[{32+2*p}:{33+2*p}], v[40:41] op_sel_hi:[1,0] neg_lo:[0,1] neg_hi:[0,1]")
        bfround(42, 42)
        a("v_rcp_f32 v42, v42")
        for p in range(4): a(f"v_cvt_pk_bf16_f32 v{16+p}, v{32+2*p}, v{33+2*p}")
        for p in range(4): a(f"v_lshlrev_b32 v{32+2*p}, 16, v{16+p}\nv_and_b32 v{33+2*p}, 0xffff0000, v{16+p}")
        for p in range(4): a(f"v_pk_mul_f32 v[{32+2*p}:{33+2*p}], v[{32+2*p}:{33+2*p}], v[42:43] op_sel_hi:[1,0]")
        for p in range(4): a(f"v_cvt_pk_bf16_f32 v{16+p}, v{32+2*p}, v{33+2*p}")
    a("s_mov_b32 s46, 0\nL_ln:")
    layernorm(None)
    a(f"ds_write_b128 v2, v[16:19] offset:{XN}\nv_add_u32 v2, {HH-XN}, v2\ns_add_u32 s46, s46, 1\ns_cmp_lt_u32 s46, 2\ns_cbranch_scc1 L_ln")
    a("s_waitcnt lgkmcnt(0)")
    stamp(9)
    a("s_barrier")
    a(f"""
s_lshl_b32 s38, s2, 2
v_mov_b32 v7, s38
s_mul_i32 s30, s30, 0x9E3779B1
s_add_u32 s30, s30, 0x7F4A7C15
""")
    for b in range(4): a(f"ds_read_b32 v{8+b}, v7 offset:{HH+1024*b}")
    a("s_waitcnt vmcnt(1)")
    for (src, dst) in ((20, 32), (24, 40), (28, 48)):
        for p in range(4): a(f"v_lshlrev_b32 v{dst+2*p}, 16, v{src+p}\nv_and_b32 v{dst+1+2*p}, 0xffff0000, v{src+p}")
    a(f"s_mov_b32 s44, {f2u(C1):#x}\nv_mov_b32 v14, {f2u(C0):#x}\ns_waitcnt lgkmcnt(0)")
    for b in range(4): a(f"v_lshlrev_b32 v{16+b}, 16, v{8+b}\nv_and_b32 v{20+b}, 0xffff0000, v{8+b}")
    a("s_mov_b32 s46, 0\nL_gate:")
    a("s_set_gpr_idx_on s46, gpr_idx(SRC0)\ns_nop 0\nv_mov_b32 v12, v16\ns_set_gpr_idx_off")
    U, T, Z = 56, 64, 72
    for p in range(4): a(f"v_pk_fma_f32 v[{U+2*p}:{U+1+2*p}], v[12:13], v[{32+2*p}:{33+2*p}], v[{40+2*p}:{41+2*p}] op_sel_hi:[0,1,1]")
    for p in range(4): a(f"v_pk_mul_f32 v[{T+2*p}:{T+1+2*p}], v[{U+2*p}:{U+1+2*p}], v[{U+2*p}:{U+1+2*p}]")
    for p in range(4): a(f"v_pk_fma_f32 v[{T+2*p}:{T+1+2*p}], v[{T+2*p}:{T+1+2*p}], s[44:45], v[14:15] op_sel_hi:[1,0,0]")
    for p in range(4): a(f"v_pk_mul_f32 v[{T+2*p}:{T+1+2*p}], v[{T+2*p}:{T+1+2*p}], v[{U+2*p}:{U+1+2*p}]")
    for p in range(8): a(f"v_exp_f32 v{T+p}, v{T+p}")
    for p in range(4): a(f"v_pk_mul_f32 v[{U+2*p}:{U+1+2*p}], v[{U+2*p}:{U+1+2*p}], v[{48+2*p}:{49+2*p}]")
    for p in range(4): a(f"v_pk_add_f32 v[{T+2*p}:{T+1+2*p}], v[{T+2*p}:{T+1+2*p}], 1.0 op_sel_hi:[1,0]")
    for p in range(8): a(f"v_rcp_f32 v{T+p}, v{T+p}")
    a(f"s_nop 0\nv_pk_mul_f32 v[{Z}:{Z+1}], v[{U}:{U+1}], v[{T}:{T+1}]")
    for p in range(1, 4): a(f"v_pk_fma_f32 v[{Z}:{Z+1}], v[{U+2*p}:{U+1+2*p}], v[{T+2*p}:{T+1+2*p}], v[{Z}:{Z+1}]")
    a(f"s_set_gpr_idx_on s46, gpr_idx(DST)\ns_nop 0\nv_add_f32 v24, v{Z}, v{Z+1}\ns_set_gpr_idx_off")
    a("s_add_u32 s46, s46, 1\ns_cmp_lt_u32 s46, 8\ns_cbranch_scc1 L_gate")
    reduce8(24, 28)
    a(f"""
v_and_b32 v8, 1, v0
v_lshl_add_u32 v8, v6, 1, v8
v_lshlrev_b32 v8, 4, v8
s_lshl_b32 s38, s37, 2
v_add_u32 v9, s38, v8
ds_write_b32 v9, v24 offset:{GG}
""")
    stamp(10)
    a(f"""
v_lshrrev_b32 v10, 5, v0
v_lshlrev_b32 v10, 12, v10
v_and_b32 v11, 31, v0
v_lshl_add_u32 v10, v11, 4, v10
s_lshl_b32 s38, s32, 2
s_add_u32 s38, s38, s34
s_lshl_b32 s38, s38, 13
s_lshl_b32 s39, s37, 9
s_add_u32 s38, s38, s39
s_add_u32 s38, s38, {QG}
s_add_u32 s50, s28, s38
s_addc_u32 s51, s29, 0
v_bfe_u32 v11, v0, 3, 2
v_lshlrev_b32 v11, 6, v11
v_lshrrev_b32 v12, 5, v0
v_lshl_add_u32 v11, v12, 5, v11
v_and_b32 v12, 7, v0
v_lshl_add_u32 v11, v12, 1, v11
s_lshl_b32 s38, s37, 8
v_add_u32 v11, s38, v11
v_mov_b32 v15, 0xffffff00
s_mov_b32 s38, {spin}
L_qpoll:
global_load_dwordx4 v[16:19], v10, s[50:51] sc1
global_load_dwordx4 v[20:23], v10, s[50:51] offset:2048 sc1
s_waitcnt vmcnt(0)
""")
    tag24(16, 24, 25); tag24(20, 26, 27)
    a(f"""
v_cmp_ne_u32 vcc, s30, v24
v_cmp_ne_u32 s[52:53], s30, v26
s_or_b64 exec, vcc, s[52:53]
s_cbranch_execz L_qdone
s_sleep {slp}
s_sub_u32 s38, s38, 1
s_cbranch_scc0 L_qpoll
L_qdone:
s_mov_b64 exec, -1
""")
    for r in range(8): a(f"v_and_b32 v{16+r}, v15, v{16+r}")
    a(f"""
v_pk_add_f32 v[16:17], v[16:17], v[20:21]
v_pk_add_f32 v[18:19], v[18:19], v[22:23]
s_nop 1
v_permlane32_swap_b32 v16, v18
v_permlane32_swap_b32 v17, v19
s_nop 1
v_pk_add_f32 v[16:17], v[16:17], v[18:19]
s_nop 0
v_cvt_pk_bf16_f32 v16, v16, v17
s_nop 0
ds_write_b16 v11, v16 offset:{QQ}
ds_write_b16_d16_hi v11, v16 offset:{QQ+16}
s_waitcnt lgkmcnt(0)
""")
    stamp(11)
    a("s_barrier")
    a("s_cmp_eq_u32 s37, 3\ns_cbranch_scc1 L_end\ns_cmp_eq_u32 s37, 2\ns_cbranch_scc1 L_final")
    a(f"""
s_lshl_b32 s38, s37, 10
v_lshlrev_b32 v2, 4, v0
v_add_u32 v2, s38, v2
v_lshrrev_b32 v3, 9, v2
v_lshlrev_b32 v3, 5, v3
s_lshl_b32 s38, s32, 5
s_add_u32 s38, s38, s33
s_lshl_b32 s38, s38, 11
s_add_u32 s38, s38, {OG}
s_add_u32 s50, s28, s38
s_addc_u32 s51, s29, 0
v_mov_b32 v43, s30
s_barrier
ds_read_b128 v[8:11], v3 offset:{ML}
ds_read_b128 v[12:15], v3 offset:{ML+16}
""")
    for w in range(4): a(f"ds_read_b128 v[{16+4*w}:{19+4*w}], v2 offset:{OP+2048*w}")
    a("""
s_waitcnt lgkmcnt(4)
v_max3_f32 v42, v8, v10, v12
v_max_f32 v42, v42, v14
v_sub_f32 v8, v8, v42
v_sub_f32 v10, v10, v42
v_sub_f32 v12, v12, v42
v_sub_f32 v14, v14, v42
v_exp_f32 v8, v8
v_exp_f32 v10, v10
v_exp_f32 v12, v12
v_exp_f32 v14, v14
v_mul_f32 v9, v8, v9
v_fmac_f32 v9, v10, v11
v_fmac_f32 v9, v12, v13
v_fmac_f32 v9, v14, v15
s_waitcnt lgkmcnt(2)
v_pk_mul_f32 v[16:17], v[16:17], v[8:9] op_sel_hi:[1,0]
v_pk_mul_f32 v[18:19], v[18:19], v[8:9] op_sel_hi:[1,0]
v_rcp_f32 v34, v9
v_log_f32 v35, v9
v_pk_fma_f32 v[16:17], v[20:21], v[10:11], v[16:17] op_sel_hi:[1,0,1]
v_pk_fma_f32 v[18:19], v[22:23], v[10:11], v[18:19] op_sel_hi:[1,0,1]
s_waitcnt lgkmcnt(0)
v_pk_fma_f32 v[16:17], v[24:25], v[12:13], v[16:17] op_sel_hi:[1,0,1]
v_pk_fma_f32 v[18:19], v[26:27], v[12:13], v[18:19] op_sel_hi:[1,0,1]
v_pk_fma_f32 v[16:17], v[28:29], v[14:15], v[16:17] op_sel_hi:[1,0,1]
v_pk_fma_f32 v[18:19], v[30:31], v[14:15], v[18:19] op_sel_hi:[1,0,1]
v_add_f32 v42, v42, v35
v_pk_mul_f32 v[16:17], v[16:17], v[34:35] op_sel_hi:[1,0]
v_pk_mul_f32 v[18:19], v[18:19], v[34:35] op_sel_hi:[1,0]
v_cvt_pk_bf16_f32 v40, v16, v17
v_cvt_pk_bf16_f32 v41, v18, v19
s_nop 0
global_store_dwordx4 v2, v[40:43], s[50:51] sc1
""")
    stamp(12)
    a(f"""
s_and_b32 s38, s33, 3
s_lshl_b32 s38, s38, 3
s_add_u32 s38, s38, s32
s_lshl_b32 s38, s38, 3
s_lshr_b32 s39, s33, 2
s_add_u32 s38, s38, s39
s_lshl_b32 s38, s38, 11
s_add_u32 s38, s38, {FG}
s_add_u32 s50, s28, s38
s_addc_u32 s51, s29, 0
s_barrier
""")
    for w in range(4): a(f"ds_read_b128 v[{16+4*w}:{19+4*w}], v2 offset:{WP+2048*w}")
    a("""
s_waitcnt lgkmcnt(2)
v_pk_add_f32 v[16:17], v[16:17], v[20:21]
v_pk_add_f32 v[18:19], v[18:19], v[22:23]
s_waitcnt lgkmcnt(0)
v_pk_add_f32 v[24:25], v[24:25], v[28:29]
v_pk_add_f32 v[26:27], v[26:27], v[30:31]
v_pk_add_f32 v[16:17], v[16:17], v[24:25]
v_pk_add_f32 v[18:19], v[18:19], v[26:27]
""")
    pack24(16)
    a("global_store_dwordx4 v2, v[16:19], s[50:51] sc1")
    if stamps:
        a("s_cmp_lg_u32 s37, 0\ns_cbranch_scc1 L_end")
        flush_stamps(range(9, 13))
    a("s_endpgm")
    a(f"""L_final:
ds_read_b128 v[32:35], v8 offset:{GG}
s_lshr_b32 s38, s2, 6
s_lshl_b32 s38, s38, 17
s_and_b32 s39, s2, 63
s_lshl_b32 s39, s39, 5
s_add_u32 s38, s38, s39
s_add_u32 s38, s38, {FG}
s_add_u32 s50, s28, s38
s_addc_u32 s51, s29, 0
v_lshlrev_b32 v10, 11, v0
s_lshl_b32 s31, s31, 16
v_lshlrev_b32 v5, 16, v5
s_waitcnt lgkmcnt(0)
v_add_f32 v32, v32, v33
v_add_f32 v34, v34, v35
v_add_f32 v32, v32, v34
""")
    bfround(32, 32)
    a("v_add_f32 v32, s31, v32")
    bfround(32, 32)
    a(f"""
v_mul_f32 v33, {f2u(-LOG2E):#x}, v32
v_exp_f32 v33, v33
s_nop 0
v_add_f32 v33, 1.0, v33
v_rcp_f32 v33, v33
s_nop 0
v_mul_f32 v32, v32, v33
""")
    bfround(32, 32)
    a(f"""
s_barrier
s_barrier
s_mov_b32 s38, {spin}
L_fpoll:
global_load_dwordx4 v[16:19], v10, s[50:51] sc1
global_load_dwordx4 v[20:23], v10, s[50:51] offset:16 sc1
s_waitcnt vmcnt(0)
""")
    tag24(16, 24, 25); tag24(20, 26, 27)
    a(f"""
v_cmp_ne_u32 vcc, s30, v24
v_cmp_ne_u32 s[52:53], s30, v26
s_or_b64 exec, vcc, s[52:53]
s_cbranch_execz L_fdone
s_sub_u32 s38, s38, 1
s_cbranch_scc0 L_fpoll
L_fdone:
s_mov_b64 exec, -1
""")
    for r in range(8): a(f"v_and_b32 v{16+r}, v15, v{16+r}")
    reduce8(16, 20)
    bfround(16, 16)
    a("v_mul_f32 v16, v16, v32")
    bfround(16, 16)
    a("""
v_add_f32 v16, v5, v16
v_cvt_pk_bf16_f32 v16, v16, v16
s_mov_b32 exec_lo, 0x00030003
s_mov_b32 exec_hi, 0x00030003
global_store_short v3, v16, s[24:25]
s_cmp_lg_u32 s2, 0
s_cbranch_scc1 L_noep
s_mov_b64 exec, 1
v_mov_b32 v0, 0
v_mov_b32 v1, s30
global_store_dword v0, v1, s[28:29]
L_noep:
""")
    stamp(13)
    flush_stamps([13])
    a("L_end:\ns_endpgm")
    return wrap(a.text(), 256, 512, lds, 192)

if __name__ == "__main__":
    open("k_st.s", "w").write(gen(stamps=True))
    open("k.s", "w").write(gen(stamps=False))
```

```python
import sys, math, struct
from asmlib import *

def f2u(x): return struct.unpack("<I", struct.pack("<f", x))[0]
LOG2E = 1.4426950408889634
C0 = -2.0 * LOG2E * math.sqrt(2.0 / math.pi)
C1 = C0 * 0.044715
SCALE = 128 ** -0.5

XS = 1088
XN = 0x0000; QP = 0x1200; QPW = 5184; QQ = 0x6400; QS = 320; OP = 0x6A00; ML = 0x8A00; WP = 0x8B00; GG = 0xAB00; CNT = 0xAC00
QG = 0x100; OG = 0x80100; FG = 0x100100

def gen(stamps=False, W=6, W0=6, step=2, NT=" nt", lds=84000, spin=200000, prewarm=True, qwarm=False, qs0=16, qs=4, os0=0, os_=1, fs0=12, fs=2, prio=True, fast=True, NF=64, wod=3, early=False, tlb=0, qn=2, qd=16, on=0, od=2, fn=0, fd=4):
    FBQ = 0x40000; FBO = 0x100000
    FS = '' if fast else ' sc1'
    a = Asm()
    def stamp(i):
        if stamps: a(f"s_memrealtime s[{76+2*i}:{77+2*i}]")
    def flush_stamps(idx):
        if not stamps: return
        a("s_waitcnt lgkmcnt(0)\ns_mov_b64 exec, 1\ns_mul_i32 s3, s2, 12\ns_add_u32 s3, s3, s36\ns_lshl_b32 s3, s3, 7\ns_add_u32 s48, s28, s3\ns_addc_u32 s49, s29, 0\ns_add_u32 s48, s48, 0x8000000\ns_addc_u32 s49, s49, 0\nv_mov_b32 v0, 0")
        for i in idx:
            a(f"v_mov_b32 v2, s{76+2*i}\nv_mov_b32 v3, s{77+2*i}\nglobal_store_dwordx2 v0, v[2:3], s[48:49] offset:{8*i}")
    def dpp(op, d, r): return f"v_{op}_f32_dpp v{d}, v{d}, v{d} row_ror:{r} row_mask:0xf bank_mask:0xf"
    def allreduce(v, t, op="add"):
        for r in (8, 4, 2, 1): a("s_nop 1\n" + dpp(op, v, r))
        for sw in (16, 32):
            a(f"v_mov_b32 v{t}, v{v}\ns_nop 1\nv_permlane{sw}_swap_b32 v{v}, v{t}\ns_nop 0\nv_{op}_f32 v{v}, v{v}, v{t}")
    def reduce8(A, B):
        for r in range(4): a(f"v_permlane32_swap_b32 v{A+r}, v{B+r}")
        for r in range(4): a(f"v_add_f32 v{A+r}, v{A+r}, v{B+r}")
        a("s_mov_b32 vcc_lo, 0xAAAAAAAA")
        a(f"v_permlane16_swap_b32 v{A}, v{A+2}\nv_permlane16_swap_b32 v{A+1}, v{A+3}\ns_mov_b32 vcc_hi, 0xAAAAAAAA")
        a(f"v_add_f32 v{A}, v{A}, v{A+2}\nv_add_f32 v{A+1}, v{A+1}, v{A+3}")
        for r in (8, 4, 2, 1):
            a("s_nop 0\n" + dpp("add", A, r) + "\n" + dpp("add", A+1, r))
        a(f"v_cndmask_b32 v{A}, v{A}, v{A+1}, vcc")
    def pack24(v):
        for r in range(4): a(f"v_add_u32 v{v+r}, 0x80, v{v+r}")
        for r in range(4): a(f"v_mov_b32_sdwa v{v+r}, s30 dst_sel:BYTE_0 dst_unused:UNUSED_PRESERVE src0_sel:BYTE_{r}")
        a("s_nop 0")
    def tag24(v, t, u):
        a(f"v_perm_b32 v{t}, v{v+1}, v{v}, s42\nv_perm_b32 v{u}, v{v+3}, v{v+2}, s43\nv_or_b32 v{t}, v{t}, v{u}")
    def bfround(d, s):
        a(f"v_cvt_pk_bf16_f32 v{d}, v{s}, v{s}\nv_and_b32 v{d}, 0xffff0000, v{d}")
    def ppoll(name, off2, s0, d, t24, FBK, sets, tmp, post):
        n = len(sets)
        def issue(r): a(f"global_load_dwordx4 v[{r}:{r+3}], v10, s[50:51] sc1\nglobal_load_dwordx4 v[{r+4}:{r+7}], v10, s[50:51] offset:{off2} sc1")
        if s0: a(f"s_sleep {s0}")
        a(f"s_mov_b32 s38, {spin}")
        for i, r in enumerate(sets):
            issue(r)
            if i < n - 1 and d: a(f"s_sleep {d}")
        a(f"L_{name}poll:")
        for i, r in enumerate(sets):
            a(f"s_waitcnt vmcnt({2*(n-1)})")
            if t24:
                tag24(r, tmp, tmp+1); tag24(r+4, tmp+2, tmp+3)
                a(f"v_cmp_ne_u32 vcc, s30, v{tmp}\nv_cmp_ne_u32 s[52:53], s30, v{tmp+2}")
            else:
                a(f"v_cmp_ne_u32 vcc, s30, v{r+3}\nv_cmp_ne_u32 s[52:53], s30, v{r+7}")
            a(f"s_or_b64 s[52:53], vcc, s[52:53]\ns_cbranch_scc0 L_{name}ok{i}")
            issue(r)
        if FBK and fast:
            a(f"s_cmp_eq_u32 s38, {spin-NF}\ns_cselect_b32 s39, {FBK}, 0\ns_add_u32 s50, s50, s39\ns_addc_u32 s51, s51, 0")
        a(f"s_sub_u32 s38, s38, 1\ns_cbranch_scc0 L_{name}poll")
        for i, r in list(enumerate(sets))[::-1]:
            a(f"L_{name}ok{i}:")
            post(r)
            if i > 0: a(f"s_branch L_{name}done")
        a(f"L_{name}done:")
    def poll(name, off2, s0, s1, t24, fb=False):
        FBK = fb
        if s0: a(f"s_sleep {s0}")
        a(f"""
s_mov_b32 s38, {spin}
L_{name}poll:
global_load_dwordx4 v[16:19], v10, s[50:51] sc1
global_load_dwordx4 v[20:23], v10, s[50:51] offset:{off2} sc1
s_waitcnt vmcnt(0)
""")
        if t24:
            tag24(16, 24, 25); tag24(20, 26, 27)
            a("v_cmp_ne_u32 vcc, s30, v24\nv_cmp_ne_u32 s[52:53], s30, v26")
        else:
            a("v_cmp_ne_u32 vcc, s30, v19\nv_cmp_ne_u32 s[52:53], s30, v23")
        a(f"""
s_or_b64 exec, vcc, s[52:53]
s_cbranch_execz L_{name}done
{"s_sleep %d" % s1 if s1 else ""}
{f"s_cmp_eq_u32 s38, {spin-NF}; s_cselect_b32 s39, {FBK}, 0; s_add_u32 s50, s50, s39; s_addc_u32 s51, s51, 0".replace("; ", chr(10)) if fb and fast else ""}
s_sub_u32 s38, s38, 1
s_cbranch_scc0 L_{name}poll
L_{name}done:
s_mov_b64 exec, -1
""")

    def ldsspin(nm, off=4, ar=12):
        a(f"""
s_mov_b32 s39, {spin}
L_spin{nm}:
ds_read_b32 v13, v{ar} offset:{off}
s_sub_u32 s39, s39, 1
s_cbranch_scc1 L_spind{nm}
s_waitcnt lgkmcnt(0)
v_readfirstlane_b32 s38, v13
s_cmp_lt_u32 s38, 4
s_cbranch_scc1 L_spin{nm}
L_spind{nm}:
""")
    stamp(0)
    a(f"""
s_cmp_ge_u32 s2, 256
s_cbranch_scc1 L_end
s_load_dwordx16 s[4:19], s[0:1], 0
s_load_dwordx8 s[20:27], s[0:1], 64
s_load_dwordx2 s[28:29], s[0:1], 96
v_lshrrev_b32 v1, 6, v0
v_and_b32 v2, 0xff, v0
v_and_b32 v0, 63, v0
v_readfirstlane_b32 s36, v1
s_and_b32 s32, s2, 7
s_lshr_b32 s33, s2, 3
s_lshr_b32 s34, s2, 6
s_and_b32 s35, s33, 7
v_lshlrev_b32 v2, 4, v2
v_and_b32 v1, 15, v0
v_lshrrev_b32 v6, 4, v0
s_mov_b32 s40, 0x05040100
s_mov_b32 s41, 0x07060302
s_and_b32 s37, s36, 3
s_lshl_b32 s47, s33, 4
s_add_u32 s47, s47, s32
s_cmp_lt_u32 s36, 4
s_cbranch_scc1 L_B
s_cmp_ge_u32 s36, 8
s_cbranch_scc1 L_C0
""")
    KR, VR, WR, FR, QR, SR, PR = 16, 48, 80, 96, 128, 144, 152
    loads = []
    for t in range(2):
        for s in range(4):
            r = KR + (t*4+s)*4
            loads.append(f"global_load_dwordx4 v[{r}:{r+3}], v3, s[6:7] offset:{t*4096-4096+s*64}{NT}")
    for t in range(2):
        for s in range(4):
            r = VR + (t*4+s)*4
            loads.append(f"global_load_dwordx4 v[{r}:{r+3}], v4, s[8:9] offset:{t*4096-4096+s*256}{NT}")
    for i in range(4):
        loads.append(f"global_load_dwordx4 v[{WR+4*i}:{WR+3+4*i}], v5, s[12:13]{NT}" + ("\nv_add_u32 v5, 0x2000, v5" if i < 3 else ""))
    WOB = """s_lshr_b32 s46, s33, 2
s_lshl_b32 s38, s32, 19
s_and_b32 s39, s46, 1
s_lshl_b32 s39, s39, 18
s_add_u32 s38, s38, s39
s_and_b32 s39, s37, 1
s_lshl_b32 s39, s39, 17
s_add_u32 s38, s38, s39
s_lshr_b32 s39, s46, 1
s_lshl_b32 s39, s39, 15
s_add_u32 s38, s38, s39
s_lshr_b32 s39, s37, 1
s_lshl_b32 s39, s39, 12
s_add_u32 s38, s38, s39
s_and_b32 s39, s33, 3
s_lshl_b32 s39, s39, 8
s_add_u32 s38, s38, s39
v_lshlrev_b32 v4, 4, v1
v_lshl_add_u32 v4, v6, 10, v4
v_add_u32 v5, s38, v4
"""
    SH = 0
    if tlb >= 1: loads = [loads[0], loads[15]] + loads[1:15] + loads[16:]; SH = 1
    if tlb >= 2: loads = loads[:2] + [loads[16]] + loads[2:16] + loads[17:]; SH = 2
    NV = 16 + (1 if tlb >= 2 else 0)
    NL = NV if wod else 20
    st = dict(issued=0, done=0)
    def issue_upto(n, lim=None):
        while st["issued"] < min(n, lim or NL):
            a(loads[st["issued"]]); st["issued"] += 1
    def wait_done(n):
        if n > st["done"]:
            a(f"s_waitcnt vmcnt({st['issued']-n})"); st["done"] = n
    a(f"""
s_lshl_b32 s44, s34, 3
s_add_u32 s44, s44, s32
s_lshl_b32 s44, s44, 20
s_lshl_b32 s45, s35, 15
s_add_u32 s44, s44, s45
s_lshl_b32 s45, s37, 13
s_add_u32 s44, s44, s45
s_add_u32 s44, s44, 0xC1000
v_lshlrev_b32 v3, 8, v1
v_lshl_add_u32 v3, v6, 4, v3
{WOB}
s_waitcnt lgkmcnt(0)
s_add_u32 s6, s6, s44
s_addc_u32 s7, s7, 0
s_add_u32 s8, s8, s44
s_addc_u32 s9, s9, 0
""")
    if not early: a("s_barrier")
    issue_upto(W0)
    if early: a("s_barrier")
    a(f"""s_branch L_A
L_C0:
v_mov_b32 v12, {CNT}
v_mov_b32 v14, 0
v_mov_b32 v15, 0
ds_write_b64 v12, v[14:15]
ds_write_b64 v12, v[14:15] offset:8
v_cmp_gt_u32 vcc, 0xE00, v2
{chr(10).join(f"v_mov_b32 v{r}, 0" for r in range(80, 92))}
s_mov_b64 exec, vcc
s_waitcnt lgkmcnt(0)
global_load_dwordx4 v[80:83], v2, s[16:17]
global_load_dwordx4 v[84:87], v2, s[18:19]
global_load_dwordx4 v[88:91], v2, s[20:21]
s_mov_b64 exec, -1
s_barrier
s_branch L_C
L_B:
""")
    a(f"""
v_lshrrev_b32 v7, 3, v1
v_lshlrev_b32 v7, 4, v7
v_lshl_add_u32 v7, v6, 2, v7
v_and_b32 v8, 7, v1
v_lshlrev_b32 v8, 4, v8
v_lshl_add_u32 v4, v7, 13, v8
s_lshl_b32 s38, s34, 20
s_lshl_b32 s39, s32, 10
s_add_u32 s38, s38, s39
s_lshl_b32 s39, s35, 7
s_add_u32 s38, s38, s39
s_lshl_b32 s39, s36, 18
s_add_u32 s38, s38, s39
v_add_u32 v4, s38, v4
s_waitcnt lgkmcnt(0)
global_load_dwordx4 v[16:19], v2, s[4:5]
""")
    for i in range(4):
        a(f"global_load_dwordx4 v[{64+4*i}:{67+4*i}], v4, s[10:11]{NT}" + ("\nv_add_u32 v4, 0x2000, v4" if i < 3 else ""))
    a(f"""
s_barrier
s_load_dword s30, s[28:29], 0
s_load_dword s31, s[22:23], 0
v_mov_b32 v12, {CNT}
v_and_b32 v3, 1, v6
v_and_b32 v4, 1, v0
v_lshl_add_u32 v3, v3, 1, v4
v_lshlrev_b32 v3, 10, v3
v_lshrrev_b32 v4, 5, v0
v_lshl_add_u32 v3, v4, 4, v3
s_lshl_b32 s38, s47, 1
v_add_u32 v3, s38, v3
s_mov_b32 s44, {f2u(1.0/512):#x}
s_mov_b32 s45, {f2u(1e-5):#x}
s_mov_b32 s42, 0x0c0c0400
s_mov_b32 s43, 0x04000c0c
s_mul_i32 s38, s36, {XS}
v_lshlrev_b32 v7, 4, v0
v_add_u32 v7, s38, v7
v_and_b32 v9, 3, v1
v_mul_u32_u24 v10, {XS}, v9
v_bfe_u32 v11, v1, 2, 1
v_lshl_add_u32 v10, v11, 5, v10
v_lshl_add_u32 v10, v6, 3, v10
s_lshl_b32 s38, s34, 8
s_lshl_b32 s39, s36, 6
s_add_u32 s38, s38, s39
v_add_u32 v10, s38, v10
v_mul_u32_u24 v11, 20, v6
v_add_lshl_u32 v11, v11, v1, 4
s_mul_i32 s38, s36, {QPW}
v_add_u32 v11, s38, v11
v_mov_b32 v50, 0
v_mov_b32 v51, 0
v_mov_b32 v52, 0
v_mov_b32 v53, 0
s_lshl_b32 s38, s32, 15
s_lshl_b32 s39, s33, 8
s_add_u32 s38, s38, s39
s_add_u32 s38, s38, {QG}
s_add_u32 s50, s28, s38
s_addc_u32 s51, s29, 0
v_lshlrev_b32 v54, 4, v1
v_lshl_add_u32 v54, v6, 13, v54
s_waitcnt vmcnt(4)
""")
    stamp(1)
    for p in range(4): a(f"v_lshlrev_b32 v{32+2*p}, 16, v{16+p}\nv_and_b32 v{33+2*p}, 0xffff0000, v{16+p}")
    a("""
v_pk_add_f32 v[40:41], v[32:33], v[34:35]
v_pk_add_f32 v[42:43], v[36:37], v[38:39]
v_pk_add_f32 v[40:41], v[40:41], v[42:43]
v_add_f32 v40, v40, v41
""")
    allreduce(40, 41)
    a("v_mul_f32 v40, s44, v40")
    for p in range(4): a(f"v_pk_add_f32 v[{42+2*p}:{43+2*p}], v[{32+2*p}:{33+2*p}], v[40:41] op_sel_hi:[1,0] neg_lo:[0,1] neg_hi:[0,1]")
    a("""
v_pk_mul_f32 v[42:43], v[42:43], v[42:43]
v_pk_fma_f32 v[42:43], v[44:45], v[44:45], v[42:43]
v_pk_fma_f32 v[42:43], v[46:47], v[46:47], v[42:43]
v_pk_fma_f32 v[42:43], v[48:49], v[48:49], v[42:43]
v_add_f32 v42, v42, v43
""")
    bfround(40, 40)
    fill = []
    for p in range(4): fill.append(f"v_pk_add_f32 v[{32+2*p}:{33+2*p}], v[{32+2*p}:{33+2*p}], v[40:41] op_sel_hi:[1,0] neg_lo:[0,1] neg_hi:[0,1]")
    for p in range(4): fill.append(f"v_cvt_pk_bf16_f32 v{16+p}, v{32+2*p}, v{33+2*p}")
    for p in range(4): fill += [f"v_lshlrev_b32 v{32+2*p}, 16, v{16+p}", f"v_and_b32 v{33+2*p}, 0xffff0000, v{16+p}"]
    a(dpp("add", 42, 8))
    for r in (4, 2, 1): a(fill.pop(0) + "\n" + fill.pop(0) + "\n" + dpp("add", 42, r))
    for sw in (16, 32):
        a(f"v_mov_b32 v43, v42\n{fill.pop(0)}\n{fill.pop(0)}\nv_permlane{sw}_swap_b32 v42, v43\n{fill.pop(0)}\nv_add_f32 v42, v42, v43")
    a("v_mul_f32 v42, s44, v42")
    bfround(42, 42)
    a("v_add_f32 v42, s45, v42")
    bfround(42, 42)
    a("v_sqrt_f32 v42, v42\n" + fill.pop(0) + "\n" + fill.pop(0))
    bfround(42, 42)
    a("v_rcp_f32 v42, v42\n" + fill.pop(0) + "\n" + fill.pop(0))
    assert not fill
    for p in range(4): a(f"v_pk_mul_f32 v[{32+2*p}:{33+2*p}], v[{32+2*p}:{33+2*p}], v[42:43] op_sel_hi:[1,0]")
    for p in range(4): a(f"v_cvt_pk_bf16_f32 v{16+p}, v{32+2*p}, v{33+2*p}")
    a(f"ds_write_b128 v7, v[16:19] offset:{XN}\nv_mov_b32 v13, 1\ns_mov_b64 exec, 1\ns_waitcnt lgkmcnt(0)\nds_add_u32 v12, v13 offset:4\ns_mov_b64 exec, -1")
    a("s_mul_i32 s30, s30, 0x9E3779B1\ns_add_u32 s30, s30, 0x7F4A7C15")
    if qwarm:
        a("s_cmp_lg_u32 s36, 0\ns_cbranch_scc1 L_noqw\ns_not_b32 s38, s30\nv_mov_b32 v40, s38\nv_mov_b32 v41, s38\nv_mov_b32 v42, s38\nv_mov_b32 v43, s38\nglobal_store_dwordx4 v54, v[40:43], s[50:51]" + FS + "\nL_noqw:")
    stamp(2)
    ldsspin("B")
    a(f"""
s_mov_b32 exec_lo, 0x00ff00ff
s_mov_b32 exec_hi, 0x00ff00ff
ds_read_b64 v[50:51], v10 offset:{XN}
s_not_b64 exec, exec
ds_read_b64 v[52:53], v10 offset:{XN}
s_mov_b64 exec, -1
s_waitcnt vmcnt(0)
""")
    stamp(3)
    for t in range(8):
        j = t // 2; sel = "s40" if t % 2 == 0 else "s41"
        a(f"v_perm_b32 v{80+2*t}, v{68+j}, v{64+j}, {sel}\nv_perm_b32 v{81+2*t}, v{76+j}, v{72+j}, {sel}")
    a("s_waitcnt lgkmcnt(0)")
    for j in range(4):
        a(f"v_mfma_f32_16x16x16_bf16 v[{96+4*j}:{99+4*j}], v[{80+4*j}:{81+4*j}], v[50:51], 0")
    for j in range(4):
        a(f"v_mfma_f32_16x16x16_bf16 v[{96+4*j}:{99+4*j}], v[{82+4*j}:{83+4*j}], v[52:53], v[{96+4*j}:{99+4*j}]")
    a(f"""
v_bfe_u32 v14, v1, 1, 2
v_mul_u32_u24 v14, 81, v14
v_lshrrev_b32 v15, 3, v1
v_mul_u32_u24 v15, 20, v15
v_add3_u32 v14, v14, v15, v6
v_and_b32 v15, 1, v1
v_lshl_add_u32 v14, v15, 3, v14
v_lshlrev_b32 v14, 4, v14
""")
    for j in range(4):
        a(f"ds_write_b128 v11, v[{96+4*j}:{99+4*j}] offset:{QP+81*16*j}")
    a(f"""
v_mov_b32 v13, 1
s_mov_b64 exec, 1
s_waitcnt lgkmcnt(0)
ds_add_rtn_u32 v13, v12, v13
s_mov_b64 exec, -1
s_waitcnt lgkmcnt(0)
v_readfirstlane_b32 s38, v13
s_cmp_lg_u32 s38, 3
s_cbranch_scc1 L_noqpub
""")
    for s in range(8):
        a(f"ds_read_b128 v[{64+4*s}:{67+4*s}], v14 offset:{QP+QPW*(s//2)+(s%2)*44*16}")
    for s in range(4):
        a(f"s_waitcnt lgkmcnt({6-2*s})")
        a(f"v_pk_add_f32 v[{64+8*s}:{65+8*s}], v[{64+8*s}:{65+8*s}], v[{68+8*s}:{69+8*s}]\nv_pk_add_f32 v[{66+8*s}:{67+8*s}], v[{66+8*s}:{67+8*s}], v[{70+8*s}:{71+8*s}]")
    for (x, y) in ((64, 72), (80, 88), (64, 80)):
        a(f"v_pk_add_f32 v[{x}:{x+1}], v[{x}:{x+1}], v[{y}:{y+1}]\nv_pk_add_f32 v[{x+2}:{x+3}], v[{x+2}:{x+3}], v[{y+2}:{y+3}]")
    pack24(64)
    a("global_store_dwordx4 v54, v[64:67], s[50:51]" + FS)
    if fast: a(f"v_add_u32 v54, {FBQ}, v54\nglobal_store_dwordx4 v54, v[64:67], s[50:51] sc1")
    a("L_noqpub:")
    stamp(4)
    def pubbases():
        a(f"""
s_lshl_b32 s38, s32, 5
s_add_u32 s38, s38, s33
s_lshl_b32 s38, s38, 11
s_add_u32 s38, s38, {OG}
s_add_u32 s54, s28, s38
s_addc_u32 s55, s29, 0
s_and_b32 s38, s33, 3
s_lshl_b32 s38, s38, 3
s_add_u32 s38, s38, s32
s_lshl_b32 s38, s38, 3
s_lshr_b32 s39, s33, 2
s_add_u32 s38, s38, s39
s_lshl_b32 s38, s38, 11
s_add_u32 s38, s38, {FG}
s_add_u32 s56, s28, s38
s_addc_u32 s57, s29, 0
""")
    pubbases()
    a(f"""
v_lshrrev_b32 v10, 5, v0
v_lshlrev_b32 v10, 12, v10
v_and_b32 v11, 31, v0
v_lshl_add_u32 v10, v11, 4, v10
s_lshl_b32 s38, s32, 2
s_add_u32 s38, s38, s34
s_lshl_b32 s38, s38, 13
s_lshl_b32 s39, s36, 9
s_add_u32 s38, s38, s39
s_add_u32 s38, s38, {QG}
s_add_u32 s50, s28, s38
s_addc_u32 s51, s29, 0
v_bfe_u32 v11, v0, 3, 2
v_lshlrev_b32 v11, 6, v11
v_lshrrev_b32 v12, 5, v0
v_lshl_add_u32 v11, v12, 5, v11
v_and_b32 v12, 7, v0
v_lshl_add_u32 v11, v12, 1, v11
s_mul_i32 s38, s36, {QS}
v_add_u32 v11, s38, v11
v_mov_b32 v15, 0xffffff00
""")
    def qpost(R):
        for r in range(8): a(f"v_and_b32 v{16+r}, v15, v{R+r}")
    if qn:
        ppoll("q", 2048, qs0, qd, True, FBQ, [64, 72, 80, 88][:qn], 44, qpost)
    else:
        poll("q", 2048, qs0, qs, True, FBQ); qpost(16)
    a(f"""
v_pk_add_f32 v[16:17], v[16:17], v[20:21]
v_pk_add_f32 v[18:19], v[18:19], v[22:23]
s_nop 1
v_permlane32_swap_b32 v16, v18
v_permlane32_swap_b32 v17, v19
s_nop 0
v_pk_add_f32 v[16:17], v[16:17], v[18:19]
v_cvt_pk_bf16_f32 v16, v16, v17
ds_write_b16 v11, v16 offset:{QQ}
ds_write_b16_d16_hi v11, v16 offset:{QQ+16}
v_lshrrev_b32 v4, 2, v1
v_lshlrev_b32 v4, 5, v4
v_mov_b32 v12, {CNT}
v_mov_b32 v13, 1
s_mov_b64 exec, 1
s_waitcnt lgkmcnt(0)
ds_add_u32 v12, v13 offset:8
s_mov_b64 exec, -1
v_mov_b32 v43, s30
""")
    stamp(5)
    a("s_cmp_eq_u32 s36, 2\ns_cbranch_scc1 L_final")
    a("s_cmp_eq_u32 s36, 3\ns_cbranch_scc1 L_B3")
    if prio: a("s_setprio 3")
    a(f"""
s_barrier
ds_read_b128 v[8:11], v4 offset:{ML}
ds_read_b128 v[12:15], v4 offset:{ML+16}
""")
    for w in range(4): a(f"ds_read_b128 v[{16+4*w}:{19+4*w}], v2 offset:{OP+2048*w}")
    stamp(6)
    a("""
s_waitcnt lgkmcnt(4)
v_max3_f32 v42, v8, v10, v12
v_max_f32 v42, v42, v14
v_sub_f32 v8, v8, v42
v_sub_f32 v10, v10, v42
v_exp_f32 v8, v8
v_sub_f32 v12, v12, v42
v_exp_f32 v10, v10
v_sub_f32 v14, v14, v42
v_exp_f32 v12, v12
v_mul_f32 v9, v8, v9
v_exp_f32 v14, v14
v_fmac_f32 v9, v10, v11
s_waitcnt lgkmcnt(2)
v_pk_mul_f32 v[16:17], v[16:17], v[8:9] op_sel_hi:[1,0]
v_fmac_f32 v9, v12, v13
v_pk_mul_f32 v[18:19], v[18:19], v[8:9] op_sel_hi:[1,0]
v_fmac_f32 v9, v14, v15
v_pk_fma_f32 v[16:17], v[20:21], v[10:11], v[16:17] op_sel_hi:[1,0,1]
v_rcp_f32 v34, v9
v_pk_fma_f32 v[18:19], v[22:23], v[10:11], v[18:19] op_sel_hi:[1,0,1]
v_log_f32 v35, v9
s_waitcnt lgkmcnt(0)
v_pk_fma_f32 v[16:17], v[24:25], v[12:13], v[16:17] op_sel_hi:[1,0,1]
v_pk_fma_f32 v[18:19], v[26:27], v[12:13], v[18:19] op_sel_hi:[1,0,1]
v_pk_fma_f32 v[16:17], v[28:29], v[14:15], v[16:17] op_sel_hi:[1,0,1]
v_pk_fma_f32 v[18:19], v[30:31], v[14:15], v[18:19] op_sel_hi:[1,0,1]
v_pk_mul_f32 v[16:17], v[16:17], v[34:35] op_sel_hi:[1,0]
v_pk_mul_f32 v[18:19], v[18:19], v[34:35] op_sel_hi:[1,0]
v_add_f32 v42, v42, v35
v_cvt_pk_bf16_f32 v40, v16, v17
v_cvt_pk_bf16_f32 v41, v18, v19
""")
    a("global_store_dwordx4 v2, v[40:43], s[54:55]" + FS)
    if fast: a(f"s_add_u32 s54, s54, {FBO}\ns_addc_u32 s55, s55, 0\nglobal_store_dwordx4 v2, v[40:43], s[54:55] sc1")
    stamp(7)
    a("s_barrier")
    for w in range(4): a(f"ds_read_b128 v[{16+4*w}:{19+4*w}], v2 offset:{WP+2048*w}")
    stamp(8)
    a("""
s_waitcnt lgkmcnt(2)
v_pk_add_f32 v[16:17], v[16:17], v[20:21]
v_pk_add_f32 v[18:19], v[18:19], v[22:23]
s_waitcnt lgkmcnt(0)
v_pk_add_f32 v[24:25], v[24:25], v[28:29]
v_pk_add_f32 v[26:27], v[26:27], v[30:31]
v_pk_add_f32 v[16:17], v[16:17], v[24:25]
v_pk_add_f32 v[18:19], v[18:19], v[26:27]
""")
    pack24(16)
    a("global_store_dwordx4 v2, v[16:19], s[56:57] sc1")
    stamp(9)
    if stamps:
        a("L_flushB:")
        flush_stamps(range(0, 12))
    a("s_endpgm")
    a("L_B3:\ns_barrier\ns_barrier\n" + ("s_branch L_flushB" if stamps else "s_endpgm"))
    a(f"""L_final:
global_load_ushort v5, v3, s[4:5]
v_and_b32 v8, 1, v0
v_lshl_add_u32 v8, v6, 1, v8
v_lshlrev_b32 v8, 4, v8
s_lshl_b32 s38, s34, 17
s_lshl_b32 s39, s32, 8
s_add_u32 s38, s38, s39
s_lshl_b32 s39, s35, 5
s_add_u32 s38, s38, s39
s_add_u32 s38, s38, {FG}
s_add_u32 s50, s28, s38
s_addc_u32 s51, s29, 0
v_lshlrev_b32 v10, 11, v0
s_lshl_b32 s31, s31, 16
s_barrier
ds_read_b128 v[32:35], v8 offset:{GG}
s_waitcnt lgkmcnt(0)
v_add_f32 v32, v32, v33
v_add_f32 v34, v34, v35
v_add_f32 v32, v32, v34
""")
    bfround(32, 32)
    a("v_add_f32 v32, s31, v32")
    bfround(32, 32)
    a(f"""
v_mul_f32 v33, {f2u(-LOG2E):#x}, v32
v_exp_f32 v33, v33
s_nop 0
v_add_f32 v33, 1.0, v33
v_rcp_f32 v33, v33
s_nop 0
v_mul_f32 v32, v32, v33
""")
    bfround(32, 32)
    a("s_waitcnt vmcnt(0)\nv_lshlrev_b32 v5, 16, v5\ns_barrier")
    if fn:
        ppoll("f", 16, fs0, fd, True, 0, [96, 104, 112, 120][:fn], 44, qpost)
    else:
        poll("f", 16, fs0, fs, True); qpost(16)
    stamp(10)
    reduce8(16, 20)
    bfround(16, 16)
    a("v_mul_f32 v16, v16, v32")
    bfround(16, 16)
    a("""
v_add_f32 v16, v5, v16
s_mov_b32 exec_lo, 0x00030003
v_cvt_pk_bf16_f32 v16, v16, v16
s_mov_b32 exec_hi, 0x00030003
global_store_short v3, v16, s[24:25]
s_cmp_lg_u32 s2, 0
s_cbranch_scc1 L_noep
s_mov_b64 exec, 1
v_mov_b32 v0, 0
v_mov_b32 v1, s30
global_store_dword v0, v1, s[28:29]
L_noep:
""")
    if stamps:
        a("s_waitcnt vmcnt(0)")
        stamp(11)
        a("s_branch L_flushB")
    a("s_endpgm")

    a("L_A:")
    stamp(1)
    a(f"""
s_load_dword s30, s[28:29], 0
v_lshrrev_b32 v9, 2, v1
v_mul_u32_u24 v7, {QS}, v9
v_lshl_add_u32 v7, v6, 4, v7
s_lshl_b32 s38, s37, 11
v_lshlrev_b32 v11, 4, v0
v_add_u32 v11, s38, v11
s_lshl_b32 s38, s37, 3
v_lshlrev_b32 v12, 5, v9
v_add_u32 v12, s38, v12
v_and_b32 v13, 3, v1
v_lshlrev_b32 v10, 14, v13
v_lshl_add_u32 v10, v9, 12, v10
v_lshl_add_u32 v10, v6, 4, v10
s_lshl_b32 s66, s32, 16
s_lshl_b32 s67, s46, 7
s_add_u32 s66, s66, s67
s_lshr_b32 s67, s37, 1
s_lshl_b32 s67, s67, 10
s_add_u32 s66, s66, s67
s_and_b32 s67, s37, 1
s_lshl_b32 s67, s67, 6
s_add_u32 s66, s66, s67
s_add_u32 s66, s66, {OG}
s_add_u32 s50, s28, s66
s_addc_u32 s51, s29, 0
s_mov_b32 s58, 0x11111111
s_mov_b32 s59, 0x11111111
s_mov_b32 s60, 0x22222222
s_mov_b32 s61, 0x22222222
s_mov_b32 s62, 0x44444444
s_mov_b32 s63, 0x44444444
s_mov_b32 s64, 0x88888888
s_mov_b32 s65, 0x88888888
s_mov_b32 s68, {f2u(SCALE):#x}
s_mov_b32 s69, {f2u(LOG2E):#x}
""")
    d = 1
    wait_done(1); stamp(2); issue_upto(W + 1)
    while st["issued"] < NL:
        d += step
        wait_done(d); issue_upto(W + d)
        if d - step < 8 + SH <= d: stamp(3)
    stamp(4)
    a("s_waitcnt lgkmcnt(0)\ns_mul_i32 s30, s30, 0x9E3779B1\ns_add_u32 s30, s30, 0x7F4A7C15")
    wait_done(8 + SH)
    a(f"v_mov_b32 v14, {CNT}")
    ldsspin("A", 8, 14)
    if prio: a("s_setprio 2")
    if wod == 1: issue_upto(20, 20)
    for s in range(4):
        a(f"ds_read_b128 v[{QR+4*s}:{QR+3+4*s}], v7 offset:{QQ+64*s}")
    stamp(6)
    for s in range(4):
        a(f"s_waitcnt lgkmcnt({3-s})")
        for t in range(2):
            r = KR + (t*4+s)*4
            c = "0" if s == 0 else f"v[{SR+4*t}:{SR+3+4*t}]"
            a(f"v_mfma_f32_16x16x32_bf16 v[{SR+4*t}:{SR+3+4*t}], v[{r}:{r+3}], v[{QR+4*s}:{QR+3+4*s}], {c}")
    a("s_nop 6")
    for p in range(4): a(f"v_cvt_pk_bf16_f32 v{PR+p}, v{SR+2*p}, v{SR+1+2*p}")
    for p in range(4): a(f"v_lshlrev_b32 v{SR+2*p}, 16, v{PR+p}\nv_and_b32 v{SR+1+2*p}, 0xffff0000, v{PR+p}")
    for p in range(4): a(f"v_pk_mul_f32 v[{SR+2*p}:{SR+1+2*p}], v[{SR+2*p}:{SR+1+2*p}], s[68:69] op_sel_hi:[1,0]")
    for p in range(4): a(f"v_cvt_pk_bf16_f32 v{PR+p}, v{SR+2*p}, v{SR+1+2*p}")
    for p in range(4): a(f"v_lshlrev_b32 v{SR+2*p}, 16, v{PR+p}\nv_and_b32 v{SR+1+2*p}, 0xffff0000, v{PR+p}")
    M, L, T = 156, 157, 158
    a(f"""
v_max3_f32 v{M}, v{SR}, v{SR+1}, v{SR+2}
v_max3_f32 v{L}, v{SR+3}, v{SR+4}, v{SR+5}
v_max3_f32 v{M}, v{M}, v{SR+6}, v{SR+7}
v_max_f32 v{M}, v{M}, v{L}
v_mov_b32 v{L}, v{M}
s_nop 1
v_permlane16_swap_b32 v{M}, v{L}
v_max_f32 v{M}, v{M}, v{L}
v_mov_b32 v{L}, v{M}
s_nop 1
v_permlane32_swap_b32 v{M}, v{L}
v_max_f32 v{M}, v{M}, v{L}
v_mul_f32 v{M}, s69, v{M}
""")
    for p in range(8): a(f"v_fma_f32 v{SR+p}, v{SR+p}, s69, -v{M}")
    for p in range(8): a(f"v_exp_f32 v{SR+p}, v{SR+p}")
    for p in range(4): a(f"v_cvt_pk_bf16_f32 v{PR+p}, v{SR+2*p}, v{SR+1+2*p}")
    cm = [f"v_cndmask_b32 v{QR+4*dl+p}, 0, v{PR+p}, s[{58+2*dl}:{59+2*dl}]" for dl in range(4) for p in range(4)]
    a(f"""
v_pk_add_f32 v[{SR}:{SR+1}], v[{SR}:{SR+1}], v[{SR+2}:{SR+3}]
v_pk_add_f32 v[{SR+4}:{SR+5}], v[{SR+4}:{SR+5}], v[{SR+6}:{SR+7}]
v_pk_add_f32 v[{SR}:{SR+1}], v[{SR}:{SR+1}], v[{SR+4}:{SR+5}]
v_add_f32 v{L}, v{SR}, v{SR+1}
v_mov_b32 v{T}, v{L}
""")
    a("\n".join(cm[:4]))
    a(f"v_permlane16_swap_b32 v{L}, v{T}\nv_add_f32 v{L}, v{L}, v{T}\nv_mov_b32 v{T}, v{L}")
    a("\n".join(cm[4:8]))
    a(f"v_permlane32_swap_b32 v{L}, v{T}\nv_add_f32 v{L}, v{L}, v{T}")
    a("\n".join(cm[8:]))
    a(f"s_mov_b64 exec, 0x1111\nds_write_b64 v12, v[{M}:{L}] offset:{ML}\ns_mov_b64 exec, -1")
    stamp(7)
    if wod == 3: issue_upto(20, 20)
    wait_done(12 + SH)
    if wod == 4: issue_upto(20, 20)
    for t in range(8):
        j = t // 2; sel = "s40" if t % 2 == 0 else "s41"
        a(f"v_perm_b32 v{FR+4*t}, v{VR+4+j}, v{VR+j}, {sel}\nv_perm_b32 v{FR+1+4*t}, v{VR+12+j}, v{VR+8+j}, {sel}")
    wait_done(NV)
    stamp(5)
    if wod == 2: issue_upto(20, 20)
    def pvm(t):
        c = "0" if t % 4 == 0 else f"v[{16+4*(t//4)}:{19+4*(t//4)}]"
        return f"v_mfma_f32_16x16x32_bf16 v[{16+4*(t//4)}:{19+4*(t//4)}], v[{FR+4*t}:{FR+3+4*t}], v[{QR+4*(t%4)}:{QR+3+4*(t%4)}], {c}"
    for t in range(8):
        j = t // 2; sel = "s40" if t % 2 == 0 else "s41"
        a(f"v_perm_b32 v{FR+2+4*t}, v{VR+20+j}, v{VR+16+j}, {sel}\nv_perm_b32 v{FR+3+4*t}, v{VR+28+j}, v{VR+24+j}, {sel}")
        if t >= 1: a(pvm(t-1))
    a("s_nop 0")
    a(pvm(7))
    a(f"""
ds_write_b128 v11, v[16:19] offset:{OP}
s_nop 6
ds_write_b128 v11, v[20:23] offset:{OP+1024}
s_waitcnt lgkmcnt(0)
""")
    stamp(8)
    a("s_barrier")
    a("s_waitcnt vmcnt(0)")
    for t in range(8):
        j = t // 2; sel = "s40" if t % 2 == 0 else "s41"
        a(f"v_perm_b32 v{FR+2*t}, v{WR+4+j}, v{WR+j}, {sel}\nv_perm_b32 v{FR+1+2*t}, v{WR+12+j}, v{WR+8+j}, {sel}")
    for r in range(40, 48): a(f"v_mov_b32 v{r}, 0")
    def opost(R):
        a(f"""
v_max_f32 v24, v{R+2}, v{R+6}
v_lshlrev_b32 v26, 16, v{R}
v_and_b32 v27, 0xffff0000, v{R}
v_max_f32_dpp v24, v24, v24 row_ror:4 row_mask:0xf bank_mask:0xf
v_lshlrev_b32 v28, 16, v{R+1}
v_and_b32 v29, 0xffff0000, v{R+1}
v_max_f32_dpp v24, v24, v24 row_ror:8 row_mask:0xf bank_mask:0xf
v_lshlrev_b32 v30, 16, v{R+4}
v_sub_f32 v18, v{R+2}, v24
v_sub_f32 v22, v{R+6}, v24
v_exp_f32 v18, v18
v_and_b32 v31, 0xffff0000, v{R+4}
v_exp_f32 v22, v22
v_lshlrev_b32 v32, 16, v{R+5}
v_and_b32 v33, 0xffff0000, v{R+5}
""")
    if on:
        ppoll("o", 2048, os0, od, False, FBO, [48, 56, 64, 72][:on], 0, opost)
    else:
        poll("o", 2048, os0, os_, False, FBO); opost(16)
    stamp(9)
    a(f"""
v_add_f32 v24, v18, v22
v_pk_mul_f32 v[26:27], v[26:27], v[18:19] op_sel_hi:[1,0]
v_pk_mul_f32 v[28:29], v[28:29], v[18:19] op_sel_hi:[1,0]
v_add_f32_dpp v24, v24, v24 row_ror:4 row_mask:0xf bank_mask:0xf
v_pk_fma_f32 v[26:27], v[30:31], v[22:23], v[26:27] op_sel_hi:[1,0,1]
v_pk_fma_f32 v[28:29], v[32:33], v[22:23], v[28:29] op_sel_hi:[1,0,1]
v_add_f32_dpp v24, v24, v24 row_ror:8 row_mask:0xf bank_mask:0xf
""")
    a(dpp("add", 26, 4) + "\nv_rcp_f32 v24, v24")
    for e in (27, 28, 29): a(dpp("add", e, 4))
    for e in (26, 27, 28, 29): a(dpp("add", e, 8))
    a("""
v_pk_mul_f32 v[26:27], v[26:27], v[24:25] op_sel_hi:[1,0]
v_pk_mul_f32 v[28:29], v[28:29], v[24:25] op_sel_hi:[1,0]
v_cvt_pk_bf16_f32 v8, v26, v27
v_cvt_pk_bf16_f32 v9, v28, v29
s_nop 0
""")
    for dl in range(4):
        for p in range(2):
            a(f"v_mov_b32_dpp v{40+2*dl+p}, v{8+p} quad_perm:[0,1,2,3] row_mask:0xf bank_mask:{1<<dl:#x}")
    for dl in range(4):
        for j in range(2):
            t = 4*j + dl
            c = "0" if dl == 0 else f"v[{128+4*j}:{131+4*j}]"
            a(f"v_mfma_f32_16x16x16_bf16 v[{128+4*j}:{131+4*j}], v[{40+2*dl}:{41+2*dl}], v[{FR+2*t}:{FR+1+2*t}], {c}")
    a(f"""
s_nop 6
ds_write_b128 v11, v[128:131] offset:{WP}
ds_write_b128 v11, v[132:135] offset:{WP+1024}
s_waitcnt lgkmcnt(0)
""")
    stamp(10)
    a("s_barrier")
    if stamps:
        stamp(11)
        flush_stamps(range(0, 12))
    a("s_endpgm")
    a(f"""L_C:
s_load_dword s30, s[28:29], 0
v_mul_u32_u24 v8, {XS}, v6
v_lshl_add_u32 v7, v1, 4, v8
s_lshl_b32 s38, s47, 1
v_add_u32 v8, s38, v8
s_mov_b32 s44, {f2u(1.0/512):#x}
s_mov_b32 s45, {f2u(1e-5):#x}
s_mov_b32 s48, 0x3f803f80
v_mov_b32 v24, 0
v_mov_b32 v25, 0
v_mov_b32 v26, 0
v_mov_b32 v27, 0
s_sleep 8
""")
    stamp(1)
    ldsspin("C")
    stamp(2)
    for i in range(4): a(f"ds_read_b128 v[{56+4*i}:{59+4*i}], v7 offset:{XN+256*i}")
    a(f"ds_read_u16 v28, v8 offset:{XN}\nds_read_u16 v29, v8 offset:{XN+16}")
    a("s_waitcnt lgkmcnt(0)")
    for i in range(16):
        a(f"v_dot2c_f32_bf16 v{24+(i%2)}, s48, v{56+i}\nv_dot2c_f32_bf16 v{26+(i%2)}, v{56+i}, v{56+i}")
    a("v_lshlrev_b32 v28, 16, v28\nv_lshlrev_b32 v29, 16, v29\ns_nop 0")
    a("v_add_f32 v24, v24, v25\nv_add_f32 v26, v26, v27")
    for r in (8, 4, 2, 1): a("s_nop 0\n" + dpp("add", 24, r) + "\n" + dpp("add", 26, r))
    a("""
v_mul_f32 v24, s44, v24
v_mul_f32 v26, s44, v26
v_fma_f32 v26, -v24, v24, v26
v_max_f32 v26, 0, v26
""")
    bfround(24, 24); bfround(26, 26)
    a("v_add_f32 v26, s45, v26\nv_sub_f32 v28, v28, v24\nv_sub_f32 v29, v29, v24")
    bfround(26, 26)
    a("v_sqrt_f32 v26, v26")
    bfround(28, 28); bfround(29, 29); bfround(26, 26)
    a("v_rcp_f32 v26, v26\ns_nop 0\nv_mul_f32 v28, v28, v26\nv_mul_f32 v29, v29, v26")
    bfround(28, 28); bfround(29, 29)
    a("s_waitcnt vmcnt(0)")
    if prewarm:
        a("s_cmp_ge_u32 s36, 10\ns_cbranch_scc1 L_nowarm")
        pubbases()
        a(f"""
s_mul_i32 s30, s30, 0x9E3779B1
s_add_u32 s30, s30, 0x7F4A7C15
s_not_b32 s38, s30
v_mov_b32 v92, s38
v_mov_b32 v93, s38
v_mov_b32 v94, s38
v_mov_b32 v95, s38
global_store_dwordx4 v2, v[92:95], s[54:55]{FS}
global_store_dwordx4 v2, v[92:95], s[56:57] sc1
L_nowarm:
""")
    for (src, dst) in ((80, 32), (84, 40), (88, 48)):
        for p in range(4): a(f"v_lshlrev_b32 v{dst+2*p}, 16, v{src+p}\nv_and_b32 v{dst+1+2*p}, 0xffff0000, v{src+p}")
    for b in range(4): a(f"v_readlane_b32 s{64+b}, v28, {16*b}\nv_readlane_b32 s{68+b}, v29, {16*b}")
    a(f"s_mov_b32 s44, {f2u(C1):#x}\nv_mov_b32 v14, {f2u(C0):#x}")
    stamp(3)
    U, T, Z = 56, 64, 72
    a("s_mov_b32 s46, 0\nL_gate:\ns_mov_b32 m0, s46\ns_nop 0\ns_movrels_b32 s72, s64")
    for p in range(4): a(f"v_pk_fma_f32 v[{U+2*p}:{U+1+2*p}], s[72:73], v[{32+2*p}:{33+2*p}], v[{40+2*p}:{41+2*p}] op_sel_hi:[0,1,1]")
    for p in range(4): a(f"v_pk_mul_f32 v[{T+2*p}:{T+1+2*p}], v[{U+2*p}:{U+1+2*p}], v[{U+2*p}:{U+1+2*p}]")
    for p in range(4): a(f"v_pk_fma_f32 v[{T+2*p}:{T+1+2*p}], v[{T+2*p}:{T+1+2*p}], s[44:45], v[14:15] op_sel_hi:[1,0,0]")
    for p in range(4): a(f"v_pk_mul_f32 v[{T+2*p}:{T+1+2*p}], v[{T+2*p}:{T+1+2*p}], v[{U+2*p}:{U+1+2*p}]")
    for p in range(8): a(f"v_exp_f32 v{T+p}, v{T+p}")
    for p in range(4): a(f"v_pk_mul_f32 v[{U+2*p}:{U+1+2*p}], v[{U+2*p}:{U+1+2*p}], v[{48+2*p}:{49+2*p}]")
    for p in range(4): a(f"v_pk_add_f32 v[{T+2*p}:{T+1+2*p}], v[{T+2*p}:{T+1+2*p}], 1.0 op_sel_hi:[1,0]")
    for p in range(8): a(f"v_rcp_f32 v{T+p}, v{T+p}")
    a(f"v_pk_mul_f32 v[{Z}:{Z+1}], v[{U}:{U+1}], v[{T}:{T+1}]")
    for p in range(1, 4): a(f"v_pk_fma_f32 v[{Z}:{Z+1}], v[{U+2*p}:{U+1+2*p}], v[{T+2*p}:{T+1+2*p}], v[{Z}:{Z+1}]")
    a(f"s_set_gpr_idx_on s46, gpr_idx(DST)\ns_nop 0\nv_add_f32 v16, v{Z}, v{Z+1}\ns_set_gpr_idx_off")
    a("s_add_u32 s46, s46, 1\ns_cmp_lt_u32 s46, 8\ns_cbranch_scc1 L_gate")
    reduce8(16, 20)
    a(f"""
v_and_b32 v8, 1, v0
v_lshl_add_u32 v8, v6, 1, v8
v_lshlrev_b32 v8, 4, v8
s_lshl_b32 s38, s37, 2
v_add_u32 v9, s38, v8
ds_write_b32 v9, v16 offset:{GG}
s_waitcnt vmcnt(0) lgkmcnt(0)
""")
    stamp(4)
    if stamps: a("s_barrier\ns_barrier")
    flush_stamps(range(0, 5))
    a("L_end:\ns_endpgm")
    return wrap(a.text(), 256, 768, lds, 160)

if __name__ == "__main__":
    import ast
    open("k4.s", "w").write(gen(stamps=False))
    for arg in sys.argv[1:]:
        name, kw = arg.split("=", 1)
        open(name + ".s", "w").write(gen(**eval("dict(" + kw + ")")))
```

```python
import sys, math, struct
from asmlib import *

def f2u(x): return struct.unpack("<I", struct.pack("<f", x))[0]
LOG2E = 1.4426950408889634
C0 = -2.0 * LOG2E * math.sqrt(2.0 / math.pi)
C1 = C0 * 0.044715
SCALE = 128 ** -0.5

XS = 1088
XN = 0x0000; QP = 0x1200; QPW = 5184; QQ = 0x6400; QS = 320; OP = 0x6A00; ML = 0x8A00; WP = 0x8B00; GG = 0xAB00; CNT = 0xAC00
QG = 0x100; OG = 0x80100; FG = 0x100100

def gen(stamps=False, W=6, W0=4, step=2, NT=" nt", lds=44160, spin=200000, prewarm=True, qwarm=False, qs0=14, qs=4, os0=8, os_=1, fs0=16, fs=2, prio=True, fast=True, NF=16, NFQ=4, wod=2, st4=1, fsl=2, f2=0, xb=1, fl=(12,(5,16)), om=0, fm=0, ofd=0, bpre=0, opf=0, opre=1, rate=None, bp=0, sched=None, pf=0, codelen=7168, il=2, vc=0, hp=0, kx=0, early=False, tlb=0, qn=0, qd=16, on=0, od=2, fn=2, fd=8):
    FBQ = 0x40000; FBO = 0x100000
    FS = '' if fast else ' sc1'
    a = Asm()
    def stamp(i):
        if stamps: a(f"s_memrealtime s[{76+2*i}:{77+2*i}]")
    def flush_stamps(idx):
        if not stamps: return
        a("s_waitcnt lgkmcnt(0)\ns_mov_b64 exec, 1\ns_mul_i32 s3, s2, 12\ns_add_u32 s3, s3, s36\ns_lshl_b32 s3, s3, 7\ns_add_u32 s48, s28, s3\ns_addc_u32 s49, s29, 0\ns_add_u32 s48, s48, 0x8000000\ns_addc_u32 s49, s49, 0\nv_mov_b32 v0, 0")
        for i in idx:
            a(f"v_mov_b32 v2, s{76+2*i}\nv_mov_b32 v3, s{77+2*i}\nglobal_store_dwordx2 v0, v[2:3], s[48:49] offset:{8*i}")
    def dpp(op, d, r): return f"v_{op}_f32_dpp v{d}, v{d}, v{d} row_ror:{r} row_mask:0xf bank_mask:0xf"
    def allreduce(v, t, op="add"):
        for r in (8, 4, 2, 1): a("s_nop 1\n" + dpp(op, v, r))
        for sw in (16, 32):
            a(f"v_mov_b32 v{t}, v{v}\ns_nop 1\nv_permlane{sw}_swap_b32 v{v}, v{t}\ns_nop 0\nv_{op}_f32 v{v}, v{v}, v{t}")
    def reduce8(A, B):
        for r in range(4): a(f"v_permlane32_swap_b32 v{A+r}, v{B+r}")
        for r in range(4): a(f"v_add_f32 v{A+r}, v{A+r}, v{B+r}")
        a("s_mov_b32 vcc_lo, 0xAAAAAAAA")
        a(f"v_permlane16_swap_b32 v{A}, v{A+2}\nv_permlane16_swap_b32 v{A+1}, v{A+3}\ns_mov_b32 vcc_hi, 0xAAAAAAAA")
        a(f"v_add_f32 v{A}, v{A}, v{A+2}\nv_add_f32 v{A+1}, v{A+1}, v{A+3}")
        for r in (8, 4, 2, 1):
            a("s_nop 0\n" + dpp("add", A, r) + "\n" + dpp("add", A+1, r))
        a(f"v_cndmask_b32 v{A}, v{A}, v{A+1}, vcc")
    def pack24(v):
        for r in range(4): a(f"v_add_u32 v{v+r}, 0x80, v{v+r}")
        for r in range(4): a(f"v_mov_b32_sdwa v{v+r}, s30 dst_sel:BYTE_0 dst_unused:UNUSED_PRESERVE src0_sel:BYTE_{r}")
        a("s_nop 0")
    def tag24(v, t, u):
        a(f"v_perm_b32 v{t}, v{v+1}, v{v}, s42\nv_perm_b32 v{u}, v{v+3}, v{v+2}, s43\nv_or_b32 v{t}, v{t}, v{u}")
    def bfround(d, s):
        a(f"v_cvt_pk_bf16_f32 v{d}, v{s}, v{s}\nv_and_b32 v{d}, 0xffff0000, v{d}")
    def ppoll(name, off2, s0, d, t24, FBK, sets, tmp, post):
        n = len(sets)
        def issue(r): a(f"global_load_dwordx4 v[{r}:{r+3}], v10, s[50:51] sc1\nglobal_load_dwordx4 v[{r+4}:{r+7}], v10, s[50:51] offset:{off2} sc1")
        if s0: a(f"s_sleep {s0}")
        a(f"s_mov_b32 s38, {spin}")
        for i, r in enumerate(sets):
            issue(r)
            if i < n - 1 and d: a(f"s_sleep {d}")
        a(f"L_{name}poll:")
        for i, r in enumerate(sets):
            a(f"s_waitcnt vmcnt({2*(n-1)})")
            if t24:
                tag24(r, tmp, tmp+1); tag24(r+4, tmp+2, tmp+3)
                a(f"v_cmp_ne_u32 vcc, s30, v{tmp}\nv_cmp_ne_u32 s[52:53], s30, v{tmp+2}")
            else:
                a(f"v_cmp_ne_u32 vcc, s30, v{r+3}\nv_cmp_ne_u32 s[52:53], s30, v{r+7}")
            a(f"s_or_b64 s[52:53], vcc, s[52:53]\ns_cbranch_scc0 L_{name}ok{i}")
            issue(r)
        if FBK and fast:
            a(f"s_cmp_eq_u32 s38, {spin-NFQ}\ns_cselect_b32 s39, {FBK}, 0\ns_add_u32 s50, s50, s39\ns_addc_u32 s51, s51, 0")
        a(f"s_sub_u32 s38, s38, 1\ns_cbranch_scc0 L_{name}poll")
        for i, r in list(enumerate(sets))[::-1]:
            a(f"L_{name}ok{i}:")
            post(r)
            if i > 0: a(f"s_branch L_{name}done")
        a(f"L_{name}done:")
    def mpoll(name, off2, s0, d, t24, FBK, sets, tmp, pre=None):
        n = len(sets)
        def issue(r): a(f"global_load_dwordx4 v[{r}:{r+3}], v10, s[50:51] sc1\nglobal_load_dwordx4 v[{r+4}:{r+7}], v10, s[50:51] offset:{off2} sc1")
        if s0: a(f"s_sleep {s0}")
        a(f"s_mov_b32 s38, {spin}\ns_mov_b64 s[66:67], -1")
        for i, r in enumerate(sets):
            issue(r)
            if i == 0 and pre: pre()
            if i < n - 1 and d: a(f"s_sleep {d}")
        a(f"L_{name}poll:")
        for i, r in enumerate(sets):
            a(f"s_waitcnt vmcnt({2*(n-1)})")
            if t24:
                tag24(r, tmp, tmp+1); tag24(r+4, tmp+2, tmp+3)
                a(f"v_cmp_ne_u32 vcc, s30, v{tmp}\nv_cmp_ne_u32 s[52:53], s30, v{tmp+2}")
                for k in range(8): a(f"v_and_b32 v{16+k}, v15, v{r+k}")
            else:
                a(f"v_cmp_ne_u32 vcc, s30, v{r+3}\nv_cmp_ne_u32 s[52:53], s30, v{r+7}")
                for k in (0, 2, 4, 6): a(f"v_mov_b64 v[{16+k}:{17+k}], v[{r+k}:{r+k+1}]")
            a(f"s_or_b64 exec, vcc, s[52:53]\ns_cbranch_execz L_{name}done")
            issue(r)
        if FBK and fast:
            a(f"s_cmp_eq_u32 s38, {spin-NF}\ns_cselect_b32 s39, {FBK}, 0\ns_add_u32 s50, s50, s39\ns_addc_u32 s51, s51, 0")
        a(f"s_sub_u32 s38, s38, 1\ns_cbranch_scc0 L_{name}poll\nL_{name}done:\ns_mov_b64 exec, -1")
    def poll(name, off2, s0, s1, t24, fb=False, pre=None):
        FBK = fb
        if s0: a(f"s_sleep {s0}")
        a(f"""
s_mov_b32 s38, {spin}
""")
        LD = f"global_load_dwordx4 v[16:19], v10, s[50:51] sc1\nglobal_load_dwordx4 v[20:23], v10, s[50:51] offset:{off2} sc1"
        if pre:
            a(LD); pre(); a(f"s_branch L_{name}chk")
        a(f"L_{name}poll:\n{LD}\nL_{name}chk:\ns_waitcnt vmcnt(0)")
        if t24:
            tag24(16, 24, 25); tag24(20, 26, 27)
            a("v_cmp_ne_u32 vcc, s30, v24\nv_cmp_ne_u32 s[52:53], s30, v26")
        else:
            a("v_cmp_ne_u32 vcc, s30, v19\nv_cmp_ne_u32 s[52:53], s30, v23")
        a(f"""
s_or_b64 exec, vcc, s[52:53]
s_cbranch_execz L_{name}done
{"s_sleep %d" % s1 if s1 else ""}
{f"s_cmp_eq_u32 s38, {spin-NF}; s_cselect_b32 s39, {FBK}, 0; s_add_u32 s50, s50, s39; s_addc_u32 s51, s51, 0".replace("; ", chr(10)) if fb and fast else ""}
s_sub_u32 s38, s38, 1
s_cbranch_scc0 L_{name}poll
L_{name}done:
s_mov_b64 exec, -1
""")

    def ldsspin(nm, off=4, ar=12, thr=4):
        a(f"""
s_mov_b32 s39, {spin}
L_spin{nm}:
ds_read_b32 v13, v{ar} offset:{off}
s_sub_u32 s39, s39, 1
s_cbranch_scc1 L_spind{nm}
s_waitcnt lgkmcnt(0)
v_readfirstlane_b32 s38, v13
s_cmp_lt_u32 s38, {thr}
s_cbranch_scc1 L_spin{nm}
L_spind{nm}:
""")
    def pubbases(mid=""):
        a(f"""
s_lshl_b32 s54, s32, 5
s_add_u32 s54, s54, s33
s_lshl_b32 s54, s54, 11
s_add_u32 s54, s54, {OG}
s_and_b32 s56, s33, 3
s_lshl_b32 s56, s56, 3
s_add_u32 s56, s56, s32
s_lshl_b32 s56, s56, 3
s_lshr_b32 s39, s33, 2
s_add_u32 s56, s56, s39
s_lshl_b32 s56, s56, 11
s_add_u32 s56, s56, {FG}
{mid}
s_add_u32 s54, s28, s54
s_addc_u32 s55, s29, 0
s_add_u32 s56, s28, s56
s_addc_u32 s57, s29, 0
""")
    stamp(0)
    a(f"""
s_cmp_ge_u32 s2, 256
s_cbranch_scc1 L_end
s_load_dwordx16 s[4:19], s[0:1], 0
s_load_dwordx8 s[20:27], s[0:1], 64
s_load_dwordx2 s[28:29], s[0:1], 96
v_lshrrev_b32 v1, 6, v0
v_and_b32 v2, 0xff, v0
v_and_b32 v0, 63, v0
v_readfirstlane_b32 s36, v1
s_and_b32 s32, s2, 7
s_lshr_b32 s33, s2, 3
s_lshr_b32 s34, s2, 6
s_and_b32 s35, s33, 7
v_lshlrev_b32 v2, 4, v2
v_and_b32 v1, 15, v0
v_lshrrev_b32 v6, 4, v0
s_mov_b32 s40, 0x05040100
s_mov_b32 s41, 0x07060302
s_and_b32 s37, s36, 3
s_lshl_b32 s47, s32, 5
s_add_u32 s47, s47, s33
s_lshl_b32 s47, s47, 4
s_cmp_lt_u32 s36, 4
s_cbranch_scc1 L_B
s_cmp_ge_u32 s36, 8
s_cbranch_scc1 L_C0
""")
    KR, VR, WR, FR, QR, SR, PR = 16, 48, 80, 96, 128, 144, 152
    loads = []
    for t in range(2):
        for s in range(4):
            r = KR + (t*4+s)*4
            loads.append(f"global_load_dwordx4 v[{r}:{r+3}], v3, s[6:7] offset:{t*4096-4096+s*64}{NT}" if not il else f"global_load_dwordx4 v[{r}:{r+3}], v{8 if kx and s >= 2 else 3}, s[{6+64*t}:{7+64*t}] offset:{(s*64) % (128 if kx else 256)}{NT}")
    for t in range(2):
        for s in range(4):
            r = VR + (t*4+s)*4
            loads.append(f"global_load_dwordx4 v[{r}:{r+3}], v4, s[8:9] offset:{t*4096-4096+s*256}{NT}" if not il else f"global_load_dwordx4 v[{r}:{r+3}], v{15 if vc else 4}, s[{8+64*t}:{9+64*t}] offset:{s*(1024 if vc else 256)}{NT}")
    for i in range(4):
        loads.append(f"global_load_dwordx4 v[{WR+4*i}:{WR+3+4*i}], v5, s[12:13]{NT}" + ("\nv_add_u32 v5, 0x2000, v5" if i < 3 else ""))
    WOB = """s_lshr_b32 s46, s33, 2
s_lshl_b32 s38, s32, 19
s_and_b32 s39, s46, 1
s_lshl_b32 s39, s39, 18
s_add_u32 s38, s38, s39
s_and_b32 s39, s37, 1
s_lshl_b32 s39, s39, 17
s_add_u32 s38, s38, s39
s_lshr_b32 s39, s46, 1
s_lshl_b32 s39, s39, 15
s_add_u32 s38, s38, s39
s_lshr_b32 s39, s37, 1
s_lshl_b32 s39, s39, 12
s_add_u32 s38, s38, s39
s_and_b32 s39, s33, 3
s_lshl_b32 s39, s39, 8
s_add_u32 s38, s38, s39
v_lshlrev_b32 v4, 4, v1
v_lshl_add_u32 v4, v6, 10, v4
v_add_u32 v5, s38, v4
"""
    SH = 0
    if tlb >= 1: loads = [loads[0], loads[15]] + loads[1:15] + loads[16:]; SH = 1
    if tlb >= 2: loads = loads[:2] + [loads[16]] + loads[2:16] + loads[17:]; SH = 2
    NV = 16 + (1 if tlb >= 2 else 0)
    NL = NV if wod else 20
    st = dict(issued=0, done=0)
    def issue_upto(n, lim=None):
        while st["issued"] < min(n, lim or NL):
            a(loads[st["issued"]]); st["issued"] += 1
    def wait_done(n):
        if n > st["done"]:
            a(f"s_waitcnt vmcnt({st['issued']-n})"); st["done"] = n
    a(f"""
s_lshl_b32 s44, s34, 3
s_add_u32 s44, s44, s32
s_lshl_b32 s44, s44, 20
s_lshl_b32 s45, s35, {[15, 15, 14][il]}
s_add_u32 s44, s44, s45
s_lshl_b32 s45, s37, {[13, 12, 12][il]}
s_add_u32 s44, s44, s45
s_add_u32 s44, s44, {0xC0000 if il else 0xC1000}
{"v_and_b32 v3, 3, v1; v_lshlrev_b32 v3, 10, v3; v_lshrrev_b32 v8, 2, v1; v_lshl_add_u32 v3, v8, 8, v3; v_lshlrev_b32 v15, 4, v0".replace("; ", chr(10)) if vc else "v_lshlrev_b32 v3, 8, v1"}
v_lshl_add_u32 v3, v6, 4, v3
{"s_and_b32 s45, s37, 1; s_lshl_b32 s45, s45, 7; v_add_u32 v3, s45, v3; v_xor_b32 v8, 0x80, v3".replace("; ", chr(10)) if kx else ""}
{f"s_bfe_u32 s45, {'s36' if hp > 8 else 's2'}, {0x10000 + (hp % 8)}; s_lshl_b32 s45, s45, 17; s_add_u32 s44, s44, s45; s_xor_b32 s45, s44, 0x20000".replace("; ", chr(10)) if hp else f"s_add_u32 s45, s44, {[0, 0x4000, 0x20000][il]}"}
{WOB}
s_waitcnt lgkmcnt(0)
s_load_dword s30, s[28:29], 0
s_add_u32 s70, s6, s45
s_addc_u32 s71, s7, 0
s_add_u32 s6, s6, s44
s_addc_u32 s7, s7, 0
s_add_u32 s72, s8, s45
s_addc_u32 s73, s9, 0
s_add_u32 s8, s8, s44
s_addc_u32 s9, s9, 0
""")
    if xb: a("s_barrier")
    if not early: a("s_barrier")
    issue_upto(W0)
    if early: a("s_barrier")
    a(f"""s_branch L_A
L_C0:
{"s_getpc_b64 s[60:61]; s_and_b32 s60, s60, 0xffffff00; v_lshlrev_b32 v16, 3, v2; v_mov_b32 v17, s61; v_min_u32 v16, CODELEN, v16; v_add_co_u32 v16, vcc, s60, v16; v_addc_co_u32 v17, vcc, 0, v17, vcc; s_cmp_ge_u32 s36, 10; s_cbranch_scc1 L_nopf; global_load_dword v18, v[16:17], off; L_nopf:".replace("; ", chr(10)) if pf else ""}
v_mov_b32 v12, {CNT}
v_mov_b32 v14, 0
v_mov_b32 v15, 0
ds_write_b64 v12, v[14:15]
ds_write_b64 v12, v[14:15] offset:8
v_cmp_gt_u32 vcc, 0xE00, v2
{chr(10).join(f"v_mov_b32 v{r}, 0" for r in range(80, 96))}
""")
    pubbases("""s_mov_b64 exec, vcc
s_waitcnt lgkmcnt(0)
""" + ("s_barrier" if xb else "") + """
global_load_dwordx4 v[80:83], v2, s[16:17]
global_load_dwordx4 v[84:87], v2, s[18:19]
global_load_dwordx4 v[88:91], v2, s[20:21]
s_mov_b64 exec, -1""")
    if prewarm: a(f"""s_cmp_ge_u32 s36, 10
s_cbranch_scc1 L_nowarm
global_store_dwordx4 v2, v[92:95], s[54:55]{FS}
global_store_dwordx4 v2, v[92:95], s[56:57] sc1
L_nowarm:""")
    a(f"""
s_barrier
s_branch L_C
L_B:
""")
    if bp: a(f"s_setprio {bp}")
    a(f"""
v_lshrrev_b32 v7, 3, v1
v_lshlrev_b32 v7, 4, v7
v_lshl_add_u32 v7, v6, 2, v7
v_and_b32 v8, 7, v1
v_lshlrev_b32 v8, 4, v8
v_lshl_add_u32 v4, v7, 13, v8
s_lshl_b32 s38, s34, 20
s_lshl_b32 s39, s32, 10
s_add_u32 s38, s38, s39
s_lshl_b32 s39, s35, 7
s_add_u32 s38, s38, s39
s_lshl_b32 s39, s36, 18
s_add_u32 s38, s38, s39
v_add_u32 v4, s38, v4
s_waitcnt lgkmcnt(0)
global_load_dwordx4 v[16:19], v2, s[4:5]
s_load_dword s30, s[28:29], 0
s_load_dword s31, s[22:23], 0
""")
    if xb: a("s_barrier")
    for i in range(4):
        a(f"global_load_dwordx4 v[{64+4*i}:{67+4*i}], v4, s[10:11]{NT}" + ("\nv_add_u32 v4, 0x2000, v4" if i < 3 else ""))
    a(f"""
s_barrier
v_mov_b32 v12, {CNT}
s_mov_b32 s44, {f2u(1.0/512):#x}
s_mov_b32 s45, {f2u(1e-5):#x}
s_mov_b32 s42, 0x0c0c0400
s_mov_b32 s43, 0x04000c0c
s_mul_i32 s38, s36, {XS}
v_lshlrev_b32 v7, 4, v0
v_add_u32 v7, s38, v7
v_and_b32 v9, 3, v1
v_mul_u32_u24 v10, {XS}, v9
v_bfe_u32 v11, v1, 2, 1
v_lshl_add_u32 v10, v11, 5, v10
v_lshl_add_u32 v10, v6, 3, v10
s_lshl_b32 s38, s34, 8
s_lshl_b32 s39, s36, 6
s_add_u32 s38, s38, s39
v_add_u32 v10, s38, v10
v_mul_u32_u24 v11, 20, v6
v_add_lshl_u32 v11, v11, v1, 4
s_mul_i32 s38, s36, {QPW}
v_add_u32 v11, s38, v11
v_mov_b32 v50, 0
v_mov_b32 v51, 0
v_mov_b32 v52, 0
v_mov_b32 v53, 0
s_lshl_b32 s38, s32, 15
s_lshl_b32 s39, s33, 8
s_add_u32 s38, s38, s39
s_add_u32 s38, s38, {QG}
s_add_u32 s50, s28, s38
s_addc_u32 s51, s29, 0
v_lshlrev_b32 v54, 4, v1
v_lshl_add_u32 v54, v6, 13, v54
s_waitcnt vmcnt(4)
""")
    stamp(1)
    for p in range(4): a(f"v_lshlrev_b32 v{32+2*p}, 16, v{16+p}\nv_and_b32 v{33+2*p}, 0xffff0000, v{16+p}")
    a("""
v_pk_add_f32 v[40:41], v[32:33], v[34:35]
v_pk_add_f32 v[42:43], v[36:37], v[38:39]
v_pk_add_f32 v[40:41], v[40:41], v[42:43]
v_add_f32 v40, v40, v41
""")
    allreduce(40, 41)
    a("v_mul_f32 v40, s44, v40")
    for p in range(4): a(f"v_pk_add_f32 v[{42+2*p}:{43+2*p}], v[{32+2*p}:{33+2*p}], v[40:41] op_sel_hi:[1,0] neg_lo:[0,1] neg_hi:[0,1]")
    a("""
v_pk_mul_f32 v[42:43], v[42:43], v[42:43]
v_pk_fma_f32 v[42:43], v[44:45], v[44:45], v[42:43]
v_pk_fma_f32 v[42:43], v[46:47], v[46:47], v[42:43]
v_pk_fma_f32 v[42:43], v[48:49], v[48:49], v[42:43]
v_add_f32 v42, v42, v43
""")
    bfround(40, 40)
    fill = []
    for p in range(4): fill.append(f"v_pk_add_f32 v[{32+2*p}:{33+2*p}], v[{32+2*p}:{33+2*p}], v[40:41] op_sel_hi:[1,0] neg_lo:[0,1] neg_hi:[0,1]")
    for p in range(4): fill.append(f"v_cvt_pk_bf16_f32 v{16+p}, v{32+2*p}, v{33+2*p}")
    for p in range(4): fill += [f"v_lshlrev_b32 v{32+2*p}, 16, v{16+p}", f"v_and_b32 v{33+2*p}, 0xffff0000, v{16+p}"]
    a(dpp("add", 42, 8))
    for r in (4, 2, 1): a(fill.pop(0) + "\n" + fill.pop(0) + "\n" + dpp("add", 42, r))
    for sw in (16, 32):
        a(f"v_mov_b32 v43, v42\n{fill.pop(0)}\n{fill.pop(0)}\nv_permlane{sw}_swap_b32 v42, v43\n{fill.pop(0)}\nv_add_f32 v42, v42, v43")
    a("v_mul_f32 v42, s44, v42")
    bfround(42, 42)
    a("v_add_f32 v42, s45, v42")
    bfround(42, 42)
    a("v_sqrt_f32 v42, v42\n" + fill.pop(0) + "\n" + fill.pop(0))
    bfround(42, 42)
    a("v_rcp_f32 v42, v42\n" + fill.pop(0) + "\n" + fill.pop(0))
    assert not fill
    for p in range(4): a(f"v_pk_mul_f32 v[{32+2*p}:{33+2*p}], v[{32+2*p}:{33+2*p}], v[42:43] op_sel_hi:[1,0]")
    for p in range(4): a(f"v_cvt_pk_bf16_f32 v{16+p}, v{32+2*p}, v{33+2*p}")
    a(f"ds_write_b128 v7, v[16:19] offset:{XN}\nv_mov_b32 v13, 1\ns_mov_b64 exec, 1\ns_waitcnt lgkmcnt(0)\nds_add_u32 v12, v13 offset:4\ns_mov_b64 exec, -1")
    a("s_mul_i32 s30, s30, 0x9E3779B1\ns_add_u32 s30, s30, 0x7F4A7C15\ns_or_b32 s30, s30, 1")
    if qwarm:
        a("s_cmp_lg_u32 s36, 0\ns_cbranch_scc1 L_noqw\ns_not_b32 s38, s30\nv_mov_b32 v40, s38\nv_mov_b32 v41, s38\nv_mov_b32 v42, s38\nv_mov_b32 v43, s38\nglobal_store_dwordx4 v54, v[40:43], s[50:51]" + FS + "\nL_noqw:")
    stamp(2)
    ldsspin("B")
    a(f"""
s_mov_b32 exec_lo, 0x00ff00ff
s_mov_b32 exec_hi, 0x00ff00ff
ds_read_b64 v[50:51], v10 offset:{XN}
s_not_b64 exec, exec
ds_read_b64 v[52:53], v10 offset:{XN}
s_mov_b64 exec, -1
s_waitcnt vmcnt(0)
""")
    stamp(3)
    for t in range(8):
        j = t // 2; sel = "s40" if t % 2 == 0 else "s41"
        a(f"v_perm_b32 v{80+2*t}, v{68+j}, v{64+j}, {sel}\nv_perm_b32 v{81+2*t}, v{76+j}, v{72+j}, {sel}")
    a("s_waitcnt lgkmcnt(0)")
    for j in range(4):
        a(f"v_mfma_f32_16x16x16_bf16 v[{96+4*j}:{99+4*j}], v[{80+4*j}:{81+4*j}], v[50:51], 0")
    for j in range(4):
        a(f"v_mfma_f32_16x16x16_bf16 v[{96+4*j}:{99+4*j}], v[{82+4*j}:{83+4*j}], v[52:53], v[{96+4*j}:{99+4*j}]")
    a(f"""
v_bfe_u32 v14, v1, 1, 2
v_mul_u32_u24 v14, 81, v14
v_lshrrev_b32 v15, 3, v1
v_mul_u32_u24 v15, 20, v15
v_add3_u32 v14, v14, v15, v6
v_and_b32 v15, 1, v1
v_lshl_add_u32 v14, v15, 3, v14
v_lshlrev_b32 v14, 4, v14
""")
    for j in range(4):
        a(f"ds_write_b128 v11, v[{96+4*j}:{99+4*j}] offset:{QP+81*16*j}")
    a(f"""
v_mov_b32 v13, 1
s_mov_b64 exec, 1
s_waitcnt lgkmcnt(0)
ds_add_rtn_u32 v13, v12, v13
s_mov_b64 exec, -1
s_waitcnt lgkmcnt(0)
v_readfirstlane_b32 s38, v13
s_cmp_lg_u32 s38, 3
s_cbranch_scc1 L_noqpub
""")
    for s in range(8):
        a(f"ds_read_b128 v[{64+4*s}:{67+4*s}], v14 offset:{QP+QPW*(s//2)+(s%2)*44*16}")
    for s in range(4):
        a(f"s_waitcnt lgkmcnt({6-2*s})")
        a(f"v_pk_add_f32 v[{64+8*s}:{65+8*s}], v[{64+8*s}:{65+8*s}], v[{68+8*s}:{69+8*s}]\nv_pk_add_f32 v[{66+8*s}:{67+8*s}], v[{66+8*s}:{67+8*s}], v[{70+8*s}:{71+8*s}]")
    for (x, y) in ((64, 72), (80, 88), (64, 80)):
        a(f"v_pk_add_f32 v[{x}:{x+1}], v[{x}:{x+1}], v[{y}:{y+1}]\nv_pk_add_f32 v[{x+2}:{x+3}], v[{x+2}:{x+3}], v[{y+2}:{y+3}]")
    pack24(64)
    a("global_store_dwordx4 v54, v[64:67], s[50:51]" + FS)
    if fast: a(f"v_add_u32 v54, {FBQ}, v54\nglobal_store_dwordx4 v54, v[64:67], s[50:51] sc1")
    if fl: a("v_mov_b32 v13, 1\ns_mov_b64 exec, 1\nds_add_u32 v12, v13\ns_mov_b64 exec, -1")
    a("L_noqpub:")
    stamp(4)
    pubbases()
    a(f"""
v_lshrrev_b32 v10, 5, v0
v_lshlrev_b32 v10, 12, v10
v_and_b32 v11, 31, v0
v_lshl_add_u32 v10, v11, 4, v10
s_lshl_b32 s38, s32, 2
s_add_u32 s38, s38, s34
s_lshl_b32 s38, s38, 13
s_lshl_b32 s39, s36, 9
s_add_u32 s38, s38, s39
s_add_u32 s38, s38, {QG}
s_add_u32 s50, s28, s38
s_addc_u32 s51, s29, 0
v_bfe_u32 v11, v0, 3, 2
v_lshlrev_b32 v11, 6, v11
v_lshrrev_b32 v12, 5, v0
v_lshl_add_u32 v11, v12, 5, v11
v_and_b32 v12, 7, v0
v_lshl_add_u32 v11, v12, 1, v11
s_mul_i32 s38, s36, {QS}
v_add_u32 v11, s38, v11
v_mov_b32 v15, 0xffffff00
""")
    def qpost(R):
        for r in range(8): a(f"v_and_b32 v{16+r}, v15, v{R+r}")
    if qn:
        ppoll("q", 2048, qs0, qd, True, FBQ, [64, 72, 80, 88][:qn], 44, qpost)
    else:
        poll("q", 2048, qs0, qs, True, FBQ, (lambda: a(f"v_mov_b32 v12, {CNT}\nv_mov_b32 v13, 1\ns_mov_b64 exec, 1\nds_add_u32 v12, v13 offset:12\ns_mov_b64 exec, -1")) if f2 else None); qpost(16)
    a(f"""
v_pk_add_f32 v[16:17], v[16:17], v[20:21]
v_pk_add_f32 v[18:19], v[18:19], v[22:23]
s_nop 1
v_permlane32_swap_b32 v16, v18
v_permlane32_swap_b32 v17, v19
s_nop 0
v_pk_add_f32 v[16:17], v[16:17], v[18:19]
v_cvt_pk_bf16_f32 v16, v16, v17
ds_write_b16 v11, v16 offset:{QQ}
ds_write_b16_d16_hi v11, v16 offset:{QQ+16}
v_lshrrev_b32 v4, 2, v1
v_lshlrev_b32 v4, 5, v4
v_mov_b32 v12, {CNT}
v_mov_b32 v13, 1
s_mov_b64 exec, 1
s_waitcnt lgkmcnt(0)
ds_add_u32 v12, v13 offset:8
s_mov_b64 exec, -1
v_mov_b32 v43, s30
""")
    stamp(5)
    a("s_cmp_eq_u32 s36, 2\ns_cbranch_scc1 L_final")
    a("s_cmp_eq_u32 s36, 3\ns_cbranch_scc1 L_B3")
    if bpre: ldsspin("M", 12, 12)
    if prio: a("s_setprio 3")
    if bpre:
        a(f"""
ds_read_b128 v[8:11], v4 offset:{ML}
ds_read_b128 v[12:15], v4 offset:{ML+16}
s_waitcnt lgkmcnt(0)
v_max3_f32 v42, v8, v10, v12
v_max_f32 v42, v42, v14
v_sub_f32 v8, v8, v42
v_sub_f32 v10, v10, v42
v_sub_f32 v12, v12, v42
v_sub_f32 v14, v14, v42
v_exp_f32 v8, v8
v_exp_f32 v10, v10
v_exp_f32 v12, v12
v_exp_f32 v14, v14
v_mul_f32 v9, v8, v9
v_fmac_f32 v9, v10, v11
v_fmac_f32 v9, v12, v13
v_fmac_f32 v9, v14, v15
v_rcp_f32 v34, v9
v_log_f32 v35, v9
v_mul_f32 v8, v8, v34
v_mul_f32 v10, v10, v34
v_mul_f32 v12, v12, v34
v_mul_f32 v14, v14, v34
v_add_f32 v42, v42, v35
s_barrier
""")
        for w in range(4): a(f"ds_read_b128 v[{16+4*w}:{19+4*w}], v2 offset:{OP+2048*w}")
        stamp(6)
        a("""
s_waitcnt lgkmcnt(3)
v_pk_mul_f32 v[16:17], v[16:17], v[8:9] op_sel_hi:[1,0]
v_pk_mul_f32 v[18:19], v[18:19], v[8:9] op_sel_hi:[1,0]
s_waitcnt lgkmcnt(2)
v_pk_fma_f32 v[16:17], v[20:21], v[10:11], v[16:17] op_sel_hi:[1,0,1]
v_pk_fma_f32 v[18:19], v[22:23], v[10:11], v[18:19] op_sel_hi:[1,0,1]
s_waitcnt lgkmcnt(1)
v_pk_fma_f32 v[16:17], v[24:25], v[12:13], v[16:17] op_sel_hi:[1,0,1]
v_pk_fma_f32 v[18:19], v[26:27], v[12:13], v[18:19] op_sel_hi:[1,0,1]
s_waitcnt lgkmcnt(0)
v_pk_fma_f32 v[16:17], v[28:29], v[14:15], v[16:17] op_sel_hi:[1,0,1]
v_pk_fma_f32 v[18:19], v[30:31], v[14:15], v[18:19] op_sel_hi:[1,0,1]
v_cvt_pk_bf16_f32 v40, v16, v17
v_cvt_pk_bf16_f32 v41, v18, v19
""")
    else:
      a(f"""
s_barrier
ds_read_b128 v[8:11], v4 offset:{ML}
ds_read_b128 v[12:15], v4 offset:{ML+16}
""")
      for w in range(4): a(f"ds_read_b128 v[{16+4*w}:{19+4*w}], v2 offset:{OP+2048*w}")
      stamp(6)
      a("""
s_waitcnt lgkmcnt(4)
v_max3_f32 v42, v8, v10, v12
v_max_f32 v42, v42, v14
v_sub_f32 v8, v8, v42
v_sub_f32 v10, v10, v42
v_exp_f32 v8, v8
v_sub_f32 v12, v12, v42
v_exp_f32 v10, v10
v_sub_f32 v14, v14, v42
v_exp_f32 v12, v12
v_mul_f32 v9, v8, v9
v_exp_f32 v14, v14
v_fmac_f32 v9, v10, v11
s_waitcnt lgkmcnt(2)
v_pk_mul_f32 v[16:17], v[16:17], v[8:9] op_sel_hi:[1,0]
v_fmac_f32 v9, v12, v13
v_pk_mul_f32 v[18:19], v[18:19], v[8:9] op_sel_hi:[1,0]
v_fmac_f32 v9, v14, v15
v_pk_fma_f32 v[16:17], v[20:21], v[10:11], v[16:17] op_sel_hi:[1,0,1]
v_rcp_f32 v34, v9
v_pk_fma_f32 v[18:19], v[22:23], v[10:11], v[18:19] op_sel_hi:[1,0,1]
v_log_f32 v35, v9
s_waitcnt lgkmcnt(0)
v_pk_fma_f32 v[16:17], v[24:25], v[12:13], v[16:17] op_sel_hi:[1,0,1]
v_pk_fma_f32 v[18:19], v[26:27], v[12:13], v[18:19] op_sel_hi:[1,0,1]
v_pk_fma_f32 v[16:17], v[28:29], v[14:15], v[16:17] op_sel_hi:[1,0,1]
v_pk_fma_f32 v[18:19], v[30:31], v[14:15], v[18:19] op_sel_hi:[1,0,1]
v_pk_mul_f32 v[16:17], v[16:17], v[34:35] op_sel_hi:[1,0]
v_pk_mul_f32 v[18:19], v[18:19], v[34:35] op_sel_hi:[1,0]
v_add_f32 v42, v42, v35
v_cvt_pk_bf16_f32 v40, v16, v17
v_cvt_pk_bf16_f32 v41, v18, v19
""")
    a("global_store_dwordx4 v2, v[40:43], s[54:55]" + FS)
    if ofd: a(f"s_sleep {ofd}")
    if fast: a(f"s_add_u32 s54, s54, {FBO}\ns_addc_u32 s55, s55, 0\nglobal_store_dwordx4 v2, v[40:43], s[54:55] sc1")
    stamp(7)
    a("s_barrier")
    for w in range(4): a(f"ds_read_b128 v[{16+4*w}:{19+4*w}], v2 offset:{WP+2048*w}")
    stamp(8)
    a("""
s_waitcnt lgkmcnt(2)
v_pk_add_f32 v[16:17], v[16:17], v[20:21]
v_pk_add_f32 v[18:19], v[18:19], v[22:23]
s_waitcnt lgkmcnt(0)
v_pk_add_f32 v[24:25], v[24:25], v[28:29]
v_pk_add_f32 v[26:27], v[26:27], v[30:31]
v_pk_add_f32 v[16:17], v[16:17], v[24:25]
v_pk_add_f32 v[18:19], v[18:19], v[26:27]
""")
    pack24(16)
    a("global_store_dwordx4 v2, v[16:19], s[56:57] sc1")
    stamp(9)
    if stamps:
        a("L_flushB:")
        flush_stamps(range(0, 12))
    a("s_endpgm")
    a("L_B3:\ns_barrier\ns_barrier\n" + ("s_branch L_flushB" if stamps else "s_endpgm"))
    a(f"""L_final:
v_and_b32 v8, 1, v0
v_lshl_add_u32 v8, v6, 1, v8
v_lshl_add_u32 v3, v8, 1, s47
global_load_ushort v5, v3, s[4:5]
v_lshlrev_b32 v8, 4, v8
s_bfe_u32 s38, s47, 0x20008
s_lshl_b32 s38, s38, 17
s_lshr_b32 s39, s32, 1
s_lshl_b32 s39, s39, 8
s_add_u32 s38, s38, s39
s_and_b32 s39, s47, 0xf0
s_add_u32 s38, s38, s39
s_add_u32 s38, s38, {FG}
s_add_u32 s50, s28, s38
s_addc_u32 s51, s29, 0
v_lshlrev_b32 v10, 11, v0
s_lshl_b32 s31, s31, 16
s_barrier
ds_read_b128 v[32:35], v8 offset:{GG}
s_waitcnt lgkmcnt(0)
v_add_f32 v32, v32, v33
v_add_f32 v34, v34, v35
v_add_f32 v32, v32, v34
""")
    bfround(32, 32)
    a("v_add_f32 v32, s31, v32")
    bfround(32, 32)
    a(f"""
v_mul_f32 v33, {f2u(-LOG2E):#x}, v32
v_exp_f32 v33, v33
s_nop 0
v_add_f32 v33, 1.0, v33
v_rcp_f32 v33, v33
s_nop 0
v_mul_f32 v32, v32, v33
""")
    bfround(32, 32)
    a("s_waitcnt vmcnt(0)\nv_lshlrev_b32 v5, 16, v5\ns_barrier")
    if fm:
        mpoll("f", 1024, fs0, fd, True, 0, [96, 104, 112][:fm], 44)
    elif fn:
        ppoll("f", 1024, fs0, fd, True, 0, [96, 104, 112, 120][:fn], 44, qpost)
    else:
        poll("f", 1024, fs0, fs, True); qpost(16)
    stamp(10)
    reduce8(16, 20)
    bfround(16, 16)
    a("v_mul_f32 v16, v16, v32")
    bfround(16, 16)
    a("""
v_add_f32 v16, v5, v16
""")
    if st4 == 0:
        a("""s_mov_b32 exec_lo, 0x00030003
v_cvt_pk_bf16_f32 v16, v16, v16
s_mov_b32 exec_hi, 0x00030003
global_store_short v3, v16, s[24:25]
""")
    else:
        a("""s_nop 1
v_mov_b32_dpp v17, v16 quad_perm:[1,0,3,2] row_mask:0xf bank_mask:0xf
v_cvt_pk_bf16_f32 v16, v16, v17
""")
        if st4 == 1:
            a("""s_mov_b32 exec_lo, 0x00010001
s_mov_b32 exec_hi, 0x00010001
global_store_dword v3, v16, s[24:25]
""")
        else:
            a("""s_nop 0
v_readlane_b32 s60, v16, 16
v_readlane_b32 s61, v16, 32
v_readlane_b32 s62, v16, 48
s_mov_b64 exec, 1
v_mov_b32 v17, s60
v_mov_b32 v18, s61
v_mov_b32 v19, s62
global_store_dwordx4 v3, v[16:19], s[24:25]
""")
    a("""
s_cmp_lg_u32 s2, 0
s_cbranch_scc1 L_noep
s_mov_b64 exec, 1
v_mov_b32 v0, 0
v_mov_b32 v1, s30
global_store_dword v0, v1, s[28:29]
L_noep:
""")
    if stamps:
        a("s_waitcnt vmcnt(0)")
        stamp(11)
        a("s_branch L_flushB")
    a("s_endpgm")

    a("L_A:")
    stamp(1)
    a(f"""
v_lshrrev_b32 v9, 2, v1
v_mul_u32_u24 v7, {QS}, v9
v_lshl_add_u32 v7, v6, 4, v7
{"s_and_b32 s38, s37, 1; s_lshl_b32 s38, s38, 7; s_xor_b32 s39, s38, 0x80; v_add_u32 v2, s39, v7; v_add_u32 v7, s38, v7".replace("; ", chr(10)) if kx else ""}
s_lshl_b32 s38, s37, 11
v_lshlrev_b32 v11, 4, v0
v_add_u32 v11, s38, v11
s_lshl_b32 s38, s37, 3
v_lshlrev_b32 v12, 5, v9
v_add_u32 v12, s38, v12
v_and_b32 v13, 3, v1
v_lshlrev_b32 v10, 12, v13
v_lshl_add_u32 v10, v9, 14, v10
v_lshl_add_u32 v10, v6, 4, v10
s_lshl_b32 s66, s32, 16
s_lshl_b32 s67, s46, 7
s_add_u32 s66, s66, s67
s_lshr_b32 s67, s37, 1
s_lshl_b32 s67, s67, 10
s_add_u32 s66, s66, s67
s_and_b32 s67, s37, 1
s_lshl_b32 s67, s67, 6
s_add_u32 s66, s66, s67
s_add_u32 s66, s66, {OG}
s_add_u32 s50, s28, s66
s_addc_u32 s51, s29, 0
s_mov_b32 s58, 0x11111111
s_mov_b32 s59, 0x11111111
s_mov_b32 s60, 0x22222222
s_mov_b32 s61, 0x22222222
s_mov_b32 s62, 0x44444444
s_mov_b32 s63, 0x44444444
s_mov_b32 s64, 0x88888888
s_mov_b32 s65, 0x88888888
s_mov_b32 s68, {f2u(SCALE):#x}
s_mov_b32 s69, {f2u(LOG2E):#x}
""")
    d = 1
    if fl:
        a(f"v_mov_b32 v14, {CNT}\ns_sleep {fsl}")
        if fl[0] > W0: ldsspin("F", 0, 14, 5)
        stamp(2); issue_upto(fl[0])
        if f2: ldsspin("G", 12, 14, 4); issue_upto(f2)
        stamp(3)
        for (dn, up) in fl[1:]: wait_done(dn); issue_upto(up)
        assert st["issued"] == NL
    elif rate:
        stamp(2); stamp(3)
        k0, k = rate
        a(f"s_sleep {k0}")
        while st["issued"] < NL:
            wait_done(st["issued"] + 1 - W); issue_upto(st["issued"] + 1)
            if st["issued"] < NL: a(f"s_sleep {k}")
    else:
        wait_done(1); stamp(2)
    if sched:
        stamp(3)
        for (dn, up) in sched: wait_done(dn); issue_upto(up)
        assert st["issued"] == NL
    issue_upto(W + 1)
    while st["issued"] < NL:
        d += step
        wait_done(d); issue_upto(W + d)
        if d - step < 8 + SH <= d: stamp(3)
    stamp(4)
    a("s_waitcnt lgkmcnt(0)\ns_mul_i32 s30, s30, 0x9E3779B1\ns_add_u32 s30, s30, 0x7F4A7C15\ns_or_b32 s30, s30, 1")
    wait_done(8 + SH)
    a(f"v_mov_b32 v14, {CNT}")
    ldsspin("A", 8, 14)
    if prio: a("s_setprio 2")
    if wod == 1: issue_upto(20, 20)
    for s in range(4):
        a(f"ds_read_b128 v[{QR+4*s}:{QR+3+4*s}], v{2 if kx and s >= 2 else 7} offset:{QQ+(64*s) % (128 if kx else 256)}")
    stamp(6)
    for s in range(4):
        a(f"s_waitcnt lgkmcnt({3-s})")
        for t in range(2):
            r = KR + (t*4+s)*4
            c = "0" if s == 0 else f"v[{SR+4*t}:{SR+3+4*t}]"
            a(f"v_mfma_f32_16x16x32_bf16 v[{SR+4*t}:{SR+3+4*t}], v[{r}:{r+3}], v[{QR+4*s}:{QR+3+4*s}], {c}")
    a("s_nop 6")
    for p in range(4): a(f"v_cvt_pk_bf16_f32 v{PR+p}, v{SR+2*p}, v{SR+1+2*p}")
    for p in range(4): a(f"v_lshlrev_b32 v{SR+2*p}, 16, v{PR+p}\nv_and_b32 v{SR+1+2*p}, 0xffff0000, v{PR+p}")
    for p in range(4): a(f"v_pk_mul_f32 v[{SR+2*p}:{SR+1+2*p}], v[{SR+2*p}:{SR+1+2*p}], s[68:69] op_sel_hi:[1,0]")
    for p in range(4): a(f"v_cvt_pk_bf16_f32 v{PR+p}, v{SR+2*p}, v{SR+1+2*p}")
    for p in range(4): a(f"v_lshlrev_b32 v{SR+2*p}, 16, v{PR+p}\nv_and_b32 v{SR+1+2*p}, 0xffff0000, v{PR+p}")
    M, L, T = 156, 157, 158
    a(f"""
v_max3_f32 v{M}, v{SR}, v{SR+1}, v{SR+2}
v_max3_f32 v{L}, v{SR+3}, v{SR+4}, v{SR+5}
v_max3_f32 v{M}, v{M}, v{SR+6}, v{SR+7}
v_max_f32 v{M}, v{M}, v{L}
v_mov_b32 v{L}, v{M}
s_nop 1
v_permlane16_swap_b32 v{M}, v{L}
v_max_f32 v{M}, v{M}, v{L}
v_mov_b32 v{L}, v{M}
s_nop 1
v_permlane32_swap_b32 v{M}, v{L}
v_max_f32 v{M}, v{M}, v{L}
v_mul_f32 v{M}, s69, v{M}
""")
    for p in range(8): a(f"v_fma_f32 v{SR+p}, v{SR+p}, s69, -v{M}")
    for p in range(8): a(f"v_exp_f32 v{SR+p}, v{SR+p}")
    for p in range(4): a(f"v_cvt_pk_bf16_f32 v{PR+p}, v{SR+2*p}, v{SR+1+2*p}")
    cm = [f"v_cndmask_b32 v{QR+4*dl+p}, 0, v{PR+p}, s[{58+2*dl}:{59+2*dl}]" for dl in range(4) for p in range(4)]
    a(f"""
v_pk_add_f32 v[{SR}:{SR+1}], v[{SR}:{SR+1}], v[{SR+2}:{SR+3}]
v_pk_add_f32 v[{SR+4}:{SR+5}], v[{SR+4}:{SR+5}], v[{SR+6}:{SR+7}]
v_pk_add_f32 v[{SR}:{SR+1}], v[{SR}:{SR+1}], v[{SR+4}:{SR+5}]
v_add_f32 v{L}, v{SR}, v{SR+1}
v_mov_b32 v{T}, v{L}
""")
    a("\n".join(cm[:4]))
    a(f"v_permlane16_swap_b32 v{L}, v{T}\nv_add_f32 v{L}, v{L}, v{T}\nv_mov_b32 v{T}, v{L}")
    a("\n".join(cm[4:8]))
    a(f"v_permlane32_swap_b32 v{L}, v{T}\nv_add_f32 v{L}, v{L}, v{T}")
    a("\n".join(cm[8:]))
    a(f"s_mov_b64 exec, 0x1111\nds_write_b64 v12, v[{M}:{L}] offset:{ML}")
    if bpre: a("s_mov_b64 exec, 1\nv_mov_b32 v13, 1\nds_add_u32 v14, v13 offset:12")
    a("s_mov_b64 exec, -1")
    stamp(7)
    if wod == 3: issue_upto(20, 20)
    wait_done(12 + SH)
    if wod == 4: issue_upto(20, 20)
    for t in range(8):
        j = t // 2; sel = "s40" if t % 2 == 0 else "s41"
        a(f"v_perm_b32 v{FR+4*t}, v{VR+4+j}, v{VR+j}, {sel}\nv_perm_b32 v{FR+1+4*t}, v{VR+12+j}, v{VR+8+j}, {sel}")
    wait_done(NV)
    stamp(5)
    if wod == 2: issue_upto(20, 20)
    def pvm(t):
        c = "0" if t % 4 == 0 else f"v[{16+4*(t//4)}:{19+4*(t//4)}]"
        return f"v_mfma_f32_16x16x32_bf16 v[{16+4*(t//4)}:{19+4*(t//4)}], v[{FR+4*t}:{FR+3+4*t}], v[{QR+4*(t%4)}:{QR+3+4*(t%4)}], {c}"
    for t in range(8):
        j = t // 2; sel = "s40" if t % 2 == 0 else "s41"
        a(f"v_perm_b32 v{FR+2+4*t}, v{VR+20+j}, v{VR+16+j}, {sel}\nv_perm_b32 v{FR+3+4*t}, v{VR+28+j}, v{VR+24+j}, {sel}")
        if t >= 1: a(pvm(t-1))
    a("s_nop 0")
    a(pvm(7))
    a(f"""
ds_write_b128 v11, v[16:19] offset:{OP}
s_nop 6
ds_write_b128 v11, v[20:23] offset:{OP+1024}
""")
    if wod == 5: issue_upto(20, 20)
    a("s_waitcnt lgkmcnt(0)")
    stamp(8)
    a("s_barrier")
    def woperm():
        a(f"s_waitcnt vmcnt({2 if opre else 0})")
        for t in range(8):
            j = t // 2; sel = "s40" if t % 2 == 0 else "s41"
            a(f"v_perm_b32 v{FR+2*t}, v{WR+4+j}, v{WR+j}, {sel}\nv_perm_b32 v{FR+1+2*t}, v{WR+12+j}, v{WR+8+j}, {sel}")
    if not opre: woperm()
    def dq(d, k): return f"v_add_f32_dpp v{d}, v{d}, v{d} quad_perm:{['[1,0,3,2]', '[2,3,0,1]'][k]} row_mask:0xf bank_mask:0xf"
    def opost(R):
        a(f"""
v_max_f32 v24, v{R+2}, v{R+6}
v_lshlrev_b32 v26, 16, v{R}
v_and_b32 v27, 0xffff0000, v{R}
v_max_f32_dpp v24, v24, v24 quad_perm:[1,0,3,2] row_mask:0xf bank_mask:0xf
v_lshlrev_b32 v28, 16, v{R+1}
v_and_b32 v29, 0xffff0000, v{R+1}
v_max_f32_dpp v24, v24, v24 quad_perm:[2,3,0,1] row_mask:0xf bank_mask:0xf
v_lshlrev_b32 v30, 16, v{R+4}
v_sub_f32 v18, v{R+2}, v24
v_sub_f32 v22, v{R+6}, v24
v_exp_f32 v18, v18
v_and_b32 v31, 0xffff0000, v{R+4}
v_exp_f32 v22, v22
v_lshlrev_b32 v32, 16, v{R+5}
v_and_b32 v33, 0xffff0000, v{R+5}
""")
    if om:
        mpoll("o", 2048, os0, od, False, FBO, [48, 56, 64][:om], 0, woperm); opost(16)
    elif on:
        ppoll("o", 2048, os0, od, False, FBO, [48, 56, 64, 72][:on], 0, opost)
    else:
        poll("o", 2048, os0, os_, False, FBO, woperm if opre else None); opost(16)
    stamp(9)
    a(f"""
v_add_f32 v24, v18, v22
v_pk_mul_f32 v[26:27], v[26:27], v[18:19] op_sel_hi:[1,0]
v_pk_mul_f32 v[28:29], v[28:29], v[18:19] op_sel_hi:[1,0]
v_add_f32_dpp v24, v24, v24 quad_perm:[1,0,3,2] row_mask:0xf bank_mask:0xf
v_pk_fma_f32 v[26:27], v[30:31], v[22:23], v[26:27] op_sel_hi:[1,0,1]
v_pk_fma_f32 v[28:29], v[32:33], v[22:23], v[28:29] op_sel_hi:[1,0,1]
v_add_f32_dpp v24, v24, v24 quad_perm:[2,3,0,1] row_mask:0xf bank_mask:0xf
""")
    a(dq(26, 0) + "\nv_rcp_f32 v24, v24")
    for e in (27, 28, 29): a(dq(e, 0))
    for e in (26, 27, 28, 29): a(dq(e, 1))
    a("""
v_pk_mul_f32 v[26:27], v[26:27], v[24:25] op_sel_hi:[1,0]
v_pk_mul_f32 v[28:29], v[28:29], v[24:25] op_sel_hi:[1,0]
v_cvt_pk_bf16_f32 v8, v26, v27
v_cvt_pk_bf16_f32 v9, v28, v29
""")
    for dl in range(4):
        for p in range(2):
            a(f"v_cndmask_b32 v{40+2*dl+p}, 0, v{8+p}, s[{58+2*dl}:{59+2*dl}]")
    for dl in (0, 2):
        for j in range(2):
            t = 4*j + dl
            c = "0" if dl == 0 else f"v[{128+4*j}:{131+4*j}]"
            a(f"v_mfma_f32_16x16x32_bf16 v[{128+4*j}:{131+4*j}], v[{40+2*dl}:{43+2*dl}], v[{FR+2*t}:{FR+3+2*t}], {c}")
    a(f"""
s_nop 6
ds_write_b128 v11, v[128:131] offset:{WP}
ds_write_b128 v11, v[132:135] offset:{WP+1024}
s_waitcnt lgkmcnt(0)
""")
    stamp(10)
    a("s_barrier")
    if stamps:
        stamp(11)
        flush_stamps(range(0, 12))
    a("s_endpgm")
    a(f"""L_C:
s_lshr_b32 s38, s32, 1
s_mul_i32 s38, s38, {XS}
v_lshl_add_u32 v7, v1, 4, s38
s_and_b32 s39, s47, 0x3ff
s_add_u32 s38, s38, s39
v_and_b32 v8, 7, v0
v_lshl_add_u32 v8, v8, 1, s38
s_mov_b32 s44, {f2u(1.0/512):#x}
s_mov_b32 s45, {f2u(1e-5):#x}
s_mov_b32 s48, 0x3f803f80
v_mov_b32 v24, 0
v_mov_b32 v25, 0
v_mov_b32 v26, 0
v_mov_b32 v27, 0
s_sleep 8
""")
    stamp(1)
    ldsspin("C")
    stamp(2)
    for i in range(4): a(f"ds_read_b128 v[{56+4*i}:{59+4*i}], v7 offset:{XN+256*i}")
    a(f"ds_read_u16 v28, v8 offset:{XN}")
    a("s_waitcnt lgkmcnt(0)")
    for i in range(16):
        a(f"v_dot2c_f32_bf16 v{24+(i%2)}, s48, v{56+i}\nv_dot2c_f32_bf16 v{26+(i%2)}, v{56+i}, v{56+i}")
    a("v_lshlrev_b32 v28, 16, v28\ns_nop 1")
    a("v_add_f32 v24, v24, v25\nv_add_f32 v26, v26, v27")
    for r in (8, 4, 2, 1): a("s_nop 0\n" + dpp("add", 24, r) + "\n" + dpp("add", 26, r))
    a("""
v_mul_f32 v24, s44, v24
v_mul_f32 v26, s44, v26
v_fma_f32 v26, -v24, v24, v26
v_max_f32 v26, 0, v26
""")
    bfround(24, 24); bfround(26, 26)
    a("v_add_f32 v26, s45, v26\nv_sub_f32 v28, v28, v24")
    bfround(26, 26)
    a("v_sqrt_f32 v26, v26")
    bfround(28, 28); bfround(26, 26)
    a("v_rcp_f32 v26, v26\ns_nop 0\nv_mul_f32 v28, v28, v26")
    bfround(28, 28)
    a("s_waitcnt vmcnt(0)")
    for (src, dst) in ((80, 32), (84, 40), (88, 48)):
        for p in range(4): a(f"v_lshlrev_b32 v{dst+2*p}, 16, v{src+p}\nv_and_b32 v{dst+1+2*p}, 0xffff0000, v{src+p}")
    for b in range(8): a(f"v_readlane_b32 s{64+b}, v28, {b}")
    a(f"s_mov_b32 s44, {f2u(C1):#x}\nv_mov_b32 v14, {f2u(C0):#x}")
    stamp(3)
    U, T, Z = 56, 64, 72
    a("s_mov_b32 s46, 0\nL_gate:\ns_mov_b32 m0, s46\ns_nop 0\ns_movrels_b32 s72, s64")
    for p in range(4): a(f"v_pk_fma_f32 v[{U+2*p}:{U+1+2*p}], s[72:73], v[{32+2*p}:{33+2*p}], v[{40+2*p}:{41+2*p}] op_sel_hi:[0,1,1]")
    for p in range(4): a(f"v_pk_mul_f32 v[{T+2*p}:{T+1+2*p}], v[{U+2*p}:{U+1+2*p}], v[{U+2*p}:{U+1+2*p}]")
    for p in range(4): a(f"v_pk_fma_f32 v[{T+2*p}:{T+1+2*p}], v[{T+2*p}:{T+1+2*p}], s[44:45], v[14:15] op_sel_hi:[1,0,0]")
    for p in range(4): a(f"v_pk_mul_f32 v[{T+2*p}:{T+1+2*p}], v[{T+2*p}:{T+1+2*p}], v[{U+2*p}:{U+1+2*p}]")
    for p in range(8): a(f"v_exp_f32 v{T+p}, v{T+p}")
    for p in range(4): a(f"v_pk_mul_f32 v[{U+2*p}:{U+1+2*p}], v[{U+2*p}:{U+1+2*p}], v[{48+2*p}:{49+2*p}]")
    for p in range(4): a(f"v_pk_add_f32 v[{T+2*p}:{T+1+2*p}], v[{T+2*p}:{T+1+2*p}], 1.0 op_sel_hi:[1,0]")
    for p in range(8): a(f"v_rcp_f32 v{T+p}, v{T+p}")
    a(f"v_pk_mul_f32 v[{Z}:{Z+1}], v[{U}:{U+1}], v[{T}:{T+1}]")
    for p in range(1, 4): a(f"v_pk_fma_f32 v[{Z}:{Z+1}], v[{U+2*p}:{U+1+2*p}], v[{T+2*p}:{T+1+2*p}], v[{Z}:{Z+1}]")
    a(f"s_set_gpr_idx_on s46, gpr_idx(DST)\ns_nop 0\nv_add_f32 v16, v{Z}, v{Z+1}\ns_set_gpr_idx_off")
    a("s_add_u32 s46, s46, 1\ns_cmp_lt_u32 s46, 8\ns_cbranch_scc1 L_gate")
    reduce8(16, 20)
    a(f"""
v_and_b32 v8, 1, v0
v_lshl_add_u32 v8, v6, 1, v8
v_lshlrev_b32 v8, 4, v8
s_lshl_b32 s38, s37, 2
v_add_u32 v9, s38, v8
ds_write_b32 v9, v16 offset:{GG}
s_waitcnt vmcnt(0) lgkmcnt(0)
""")
    stamp(4)
    if stamps: a("s_barrier\ns_barrier")
    flush_stamps(range(0, 5))
    a("L_end:\ns_endpgm")
    return wrap(a.text().replace("CODELEN", "L_end-L_C0-4"), 256, 768, lds, 160)

if __name__ == "__main__":
    import ast
    open("k5.s", "w").write(gen(stamps=False))
    for arg in sys.argv[1:]:
        name, kw = arg.split("=", 1)
        open(name + ".s", "w").write(gen(**eval("dict(" + kw + ")")))
```

```python
import sys, math, struct
from asmlib import *

def f2u(x): return struct.unpack("<I", struct.pack("<f", x))[0]
LOG2E = 1.4426950408889634
C0 = -2.0 * LOG2E * math.sqrt(2.0 / math.pi)
C1 = C0 * 0.044715
SCALE = 128 ** -0.5

XS = 1088
XN = 0x0000; QP = 0x1200; QPW = 5184; QQ = 0x6400; QS = 320; OP = 0x6A00; ML = 0x8A00; WP = 0x8B00; GG = 0xAB00; CNT = 0xAC00
QG = 0x100; OG = 0x80100; FG = 0x100100

def gen(stamps=False, W=6, W0=4, step=2, NT=" nt", lds=44160, spin=200000, prewarm=True, qwarm=False, qs0=16, qs=4, os0=8, os_=1, fs0=18, fs=2, prio=True, fast=True, NF=16, NFQ=4, wod=2, NQ=' nt', NO=' nt', NK=' nt', cl=2, f1=5, vp2=0, qb=1, cln=0, fsf='', st4=1, fsl=2, f2=0, xb=0, spz=1, ap=0, fl=(12,(5,16)), om=0, fm=2, ofd=0, bpre=1, opf=0, opre=1, rate=None, bp=3, sched=None, pf=0, codelen=7168, il=2, vc=0, hp=0, kx=0, early=False, tlb=0, qn=0, qd=16, on=0, od=2, fn=2, fd=6):
    FBQ = 0x40000; FBO = 0x100000
    FS = fsf if fast else ' sc1'
    a = Asm()
    def stamp(i):
        if stamps: a(f"s_memrealtime s[{76+2*i}:{77+2*i}]")
    def flush_stamps(idx):
        if not stamps: return
        a("s_waitcnt lgkmcnt(0)\ns_mov_b64 exec, 1\ns_mul_i32 s3, s2, 12\ns_add_u32 s3, s3, s36\ns_lshl_b32 s3, s3, 7\ns_add_u32 s48, s28, s3\ns_addc_u32 s49, s29, 0\ns_add_u32 s48, s48, 0x8000000\ns_addc_u32 s49, s49, 0\nv_mov_b32 v0, 0")
        for i in idx:
            a(f"v_mov_b32 v2, s{76+2*i}\nv_mov_b32 v3, s{77+2*i}\nglobal_store_dwordx2 v0, v[2:3], s[48:49] offset:{8*i}")
    def dpp(op, d, r): return f"v_{op}_f32_dpp v{d}, v{d}, v{d} row_ror:{r} row_mask:0xf bank_mask:0xf"
    def allreduce(v, t, op="add"):
        for r in (8, 4, 2, 1): a("s_nop 1\n" + dpp(op, v, r))
        for sw in (16, 32):
            a(f"v_mov_b32 v{t}, v{v}\ns_nop 1\nv_permlane{sw}_swap_b32 v{v}, v{t}\ns_nop 0\nv_{op}_f32 v{v}, v{v}, v{t}")
    def reduce8(A, B, sel=True):
        for r in range(4): a(f"v_permlane32_swap_b32 v{A+r}, v{B+r}")
        for r in range(4): a(f"v_add_f32 v{A+r}, v{A+r}, v{B+r}")
        a("s_mov_b32 vcc_lo, 0xAAAAAAAA")
        a(f"v_permlane16_swap_b32 v{A}, v{A+2}\nv_permlane16_swap_b32 v{A+1}, v{A+3}\ns_mov_b32 vcc_hi, 0xAAAAAAAA")
        a(f"v_add_f32 v{A}, v{A}, v{A+2}\nv_add_f32 v{A+1}, v{A+1}, v{A+3}")
        for r in (8, 4, 2, 1):
            a("s_nop 0\n" + dpp("add", A, r) + "\n" + dpp("add", A+1, r))
        if sel: a(f"v_cndmask_b32 v{A}, v{A}, v{A+1}, vcc")
    def pack24(v):
        for r in range(4): a(f"v_add_u32 v{v+r}, 0x80, v{v+r}")
        for r in range(4): a(f"v_mov_b32_sdwa v{v+r}, s30 dst_sel:BYTE_0 dst_unused:UNUSED_PRESERVE src0_sel:BYTE_{r}")
        a("s_nop 0")
    def tag24(v, t, u):
        a(f"v_perm_b32 v{t}, v{v+1}, v{v}, s42\nv_perm_b32 v{u}, v{v+3}, v{v+2}, s43\nv_or_b32 v{t}, v{t}, v{u}")
    def bfround(d, s):
        a(f"v_cvt_pk_bf16_f32 v{d}, 0, v{s}")
    def ppoll(name, off2, s0, d, t24, FBK, sets, tmp, post):
        n = len(sets)
        def issue(r): a(f"global_load_dwordx4 v[{r}:{r+3}], v10, s[50:51] sc1\nglobal_load_dwordx4 v[{r+4}:{r+7}], v10, s[50:51] offset:{off2} sc1")
        if s0: a(f"s_sleep {s0}")
        a(f"s_mov_b32 s38, {spin}")
        for i, r in enumerate(sets):
            issue(r)
            if i < n - 1 and d: a(f"s_sleep {d}")
        a(f"L_{name}poll:")
        for i, r in enumerate(sets):
            a(f"s_waitcnt vmcnt({2*(n-1)})")
            if t24:
                tag24(r, tmp, tmp+1); tag24(r+4, tmp+2, tmp+3)
                a(f"v_cmp_ne_u32 vcc, s30, v{tmp}\nv_cmp_ne_u32 s[52:53], s30, v{tmp+2}")
            else:
                a(f"v_cmp_ne_u32 vcc, s30, v{r+3}\nv_cmp_ne_u32 s[52:53], s30, v{r+7}")
            a(f"s_or_b64 s[52:53], vcc, s[52:53]\ns_cbranch_scc0 L_{name}ok{i}")
            issue(r)
        if FBK and fast:
            a(f"s_cmp_eq_u32 s38, {spin-NFQ}\ns_cselect_b32 s39, {FBK}, 0\ns_add_u32 s50, s50, s39\ns_addc_u32 s51, s51, 0")
        a(f"s_sub_u32 s38, s38, 1\ns_cbranch_scc0 L_{name}poll")
        for i, r in list(enumerate(sets))[::-1]:
            a(f"L_{name}ok{i}:")
            post(r)
            if i > 0: a(f"s_branch L_{name}done")
        a(f"L_{name}done:")
    def mpoll(name, off2, s0, d, t24, FBK, sets, tmp, pre=None):
        n = len(sets)
        def issue(r): a(f"global_load_dwordx4 v[{r}:{r+3}], v10, s[50:51] sc1\nglobal_load_dwordx4 v[{r+4}:{r+7}], v10, s[50:51] offset:{off2} sc1")
        if s0: a(f"s_sleep {s0}")
        a(f"s_mov_b32 s38, {spin}\ns_mov_b64 s[66:67], -1")
        for i, r in enumerate(sets):
            issue(r)
            if i == 0 and pre: pre()
            if i < n - 1 and d: a(f"s_sleep {d}")
        a(f"L_{name}poll:")
        for i, r in enumerate(sets):
            a(f"s_waitcnt vmcnt({2*(n-1)})")
            if t24:
                tag24(r, tmp, tmp+1); tag24(r+4, tmp+2, tmp+3)
                a(f"v_cmp_ne_u32 vcc, s30, v{tmp}\nv_cmp_ne_u32 s[52:53], s30, v{tmp+2}")
                for k in range(8): a(f"v_and_b32 v{16+k}, v15, v{r+k}")
            else:
                a(f"v_cmp_ne_u32 vcc, s30, v{r+3}\nv_cmp_ne_u32 s[52:53], s30, v{r+7}")
                for k in (0, 2, 4, 6): a(f"v_mov_b64 v[{16+k}:{17+k}], v[{r+k}:{r+k+1}]")
            a(f"s_or_b64 exec, vcc, s[52:53]\ns_cbranch_execz L_{name}done")
            issue(r)
        if FBK and fast:
            a(f"s_cmp_eq_u32 s38, {spin-NF}\ns_cselect_b32 s39, {FBK}, 0\ns_add_u32 s50, s50, s39\ns_addc_u32 s51, s51, 0")
        a(f"s_sub_u32 s38, s38, 1\ns_cbranch_scc0 L_{name}poll\nL_{name}done:\ns_mov_b64 exec, -1")
    def poll(name, off2, s0, s1, t24, fb=False, pre=None):
        FBK = fb
        if s0: a(f"s_sleep {s0}")
        a(f"""
s_mov_b32 s38, {spin}
""")
        LD = f"global_load_dwordx4 v[16:19], v10, s[50:51] sc1\nglobal_load_dwordx4 v[20:23], v10, s[50:51] offset:{off2} sc1"
        if pre:
            a(LD); pre(); a(f"s_branch L_{name}chk")
        a(f"L_{name}poll:\n{LD}\nL_{name}chk:\ns_waitcnt vmcnt(0)")
        if t24:
            tag24(16, 24, 25); tag24(20, 26, 27)
            a("v_cmp_ne_u32 vcc, s30, v24\nv_cmp_ne_u32 s[52:53], s30, v26")
        else:
            a("v_cmp_ne_u32 vcc, s30, v19\nv_cmp_ne_u32 s[52:53], s30, v23")
        a(f"""
s_or_b64 exec, vcc, s[52:53]
s_cbranch_execz L_{name}done
{"s_sleep %d" % s1 if s1 else ""}
{f"s_cmp_eq_u32 s38, {spin-NF}; s_cselect_b32 s39, {FBK}, 0; s_add_u32 s50, s50, s39; s_addc_u32 s51, s51, 0".replace("; ", chr(10)) if fb and fast else ""}
s_sub_u32 s38, s38, 1
s_cbranch_scc0 L_{name}poll
L_{name}done:
s_mov_b64 exec, -1
""")

    def ldsspin(nm, off=4, ar=12, thr=4):
        a(f"""
s_mov_b32 s39, {spin}
L_spin{nm}:
{f"s_sleep {spz}" if spz and nm in "FC" else ""}
ds_read_b32 v13, v{ar} offset:{off}
s_sub_u32 s39, s39, 1
s_cbranch_scc1 L_spind{nm}
s_waitcnt lgkmcnt(0)
v_readfirstlane_b32 s38, v13
s_cmp_lt_u32 s38, {thr}
s_cbranch_scc1 L_spin{nm}
L_spind{nm}:
""")
    def pubbases(mid=""):
        a(f"""
s_lshl_b32 s54, s32, 5
s_add_u32 s54, s54, s33
s_lshl_b32 s54, s54, 11
s_add_u32 s54, s54, {OG}
s_and_b32 s56, s33, 3
s_lshl_b32 s56, s56, 3
s_add_u32 s56, s56, s32
s_lshl_b32 s56, s56, 3
s_lshr_b32 s39, s33, 2
s_add_u32 s56, s56, s39
s_lshl_b32 s56, s56, 11
s_add_u32 s56, s56, {FG}
{mid}
s_add_u32 s54, s28, s54
s_addc_u32 s55, s29, 0
s_add_u32 s56, s28, s56
s_addc_u32 s57, s29, 0
""")
    stamp(0)
    a(f"""
s_cmp_ge_u32 s2, 256
s_cbranch_scc1 L_end
s_load_dwordx16 s[4:19], s[0:1], 0
s_load_dwordx8 s[20:27], s[0:1], 64
s_load_dwordx2 s[28:29], s[0:1], 96
v_lshrrev_b32 v1, 6, v0
v_and_b32 v2, 0xff, v0
v_and_b32 v0, 63, v0
v_readfirstlane_b32 s36, v1
s_and_b32 s32, s2, 7
s_lshr_b32 s33, s2, 3
s_lshr_b32 s34, s2, 6
s_and_b32 s35, s33, 7
v_lshlrev_b32 v2, 4, v2
v_and_b32 v1, 15, v0
v_lshrrev_b32 v6, 4, v0
s_mov_b32 s40, 0x05040100
s_mov_b32 s41, 0x07060302
s_and_b32 s37, s36, 3
s_lshl_b32 s47, s32, 5
s_add_u32 s47, s47, s33
s_lshl_b32 s47, s47, 4
s_cmp_lt_u32 s36, 4
s_cbranch_scc1 L_B
s_cmp_ge_u32 s36, 8
s_cbranch_scc1 L_C0
""")
    KR, VR, WR, FR, QR, SR, PR = 16, 48, 80, 96, 128, 144, 152
    loads = []
    for t in range(2):
        for s in range(4):
            r = KR + (t*4+s)*4
            loads.append(f"global_load_dwordx4 v[{r}:{r+3}], v3, s[6:7] offset:{t*4096-4096+s*64}{NT}" if not il else f"global_load_dwordx4 v[{r}:{r+3}], v{8 if kx and s >= 2 else 3}, s[{6+64*t}:{7+64*t}] offset:{(s*64) % (128 if kx else 256)}{NK}")
    for t in range(2):
        for s in range(4):
            r = VR + (t*4+s)*4
            loads.append(f"global_load_dwordx4 v[{r}:{r+3}], v4, s[8:9] offset:{t*4096-4096+s*256}{NT}" if not il else f"global_load_dwordx4 v[{r}:{r+3}], v{15 if vc else 4}, s[{8+64*t}:{9+64*t}] offset:{s*(1024 if vc else 256)}{NT}")
    for i in range(4):
        loads.append(f"global_load_dwordx4 v[{WR+4*i}:{WR+3+4*i}], v5, s[12:13]{NO}" + ("\nv_add_u32 v5, 0x2000, v5" if i < 3 else ""))
    WOB = """s_lshr_b32 s46, s33, 2
s_lshl_b32 s38, s32, 19
s_and_b32 s39, s46, 1
s_lshl_b32 s39, s39, 18
s_add_u32 s38, s38, s39
s_and_b32 s39, s37, 1
s_lshl_b32 s39, s39, 17
s_add_u32 s38, s38, s39
s_lshr_b32 s39, s46, 1
s_lshl_b32 s39, s39, 15
s_add_u32 s38, s38, s39
s_lshr_b32 s39, s37, 1
s_lshl_b32 s39, s39, 12
s_add_u32 s38, s38, s39
s_and_b32 s39, s33, 3
s_lshl_b32 s39, s39, 8
s_add_u32 s38, s38, s39
v_lshlrev_b32 v4, 4, v1
v_lshl_add_u32 v4, v6, 10, v4
v_add_u32 v5, s38, v4
"""
    SH = 0
    if tlb >= 1: loads = [loads[0], loads[15]] + loads[1:15] + loads[16:]; SH = 1
    if tlb >= 2: loads = loads[:2] + [loads[16]] + loads[2:16] + loads[17:]; SH = 2
    NV = 16 + (1 if tlb >= 2 else 0)
    NL = NV if wod else 20
    st = dict(issued=0, done=0)
    def issue_upto(n, lim=None):
        while st["issued"] < min(n, lim or NL):
            a(loads[st["issued"]]); st["issued"] += 1
    def wait_done(n):
        if n > st["done"]:
            a(f"s_waitcnt vmcnt({st['issued']-n})"); st["done"] = n
    a(f"""
s_lshl_b32 s44, s34, 3
s_add_u32 s44, s44, s32
s_lshl_b32 s44, s44, 20
s_lshl_b32 s45, s35, {[15, 15, 14][il]}
s_add_u32 s44, s44, s45
s_lshl_b32 s45, s37, {[13, 12, 12][il]}
s_add_u32 s44, s44, s45
s_add_u32 s44, s44, {0xC0000 if il else 0xC1000}
{"v_and_b32 v3, 3, v1; v_lshlrev_b32 v3, 10, v3; v_lshrrev_b32 v8, 2, v1; v_lshl_add_u32 v3, v8, 8, v3; v_lshlrev_b32 v15, 4, v0".replace("; ", chr(10)) if vc else "v_lshlrev_b32 v3, 8, v1"}
v_lshl_add_u32 v3, v6, 4, v3
{"s_and_b32 s45, s37, 1; s_lshl_b32 s45, s45, 7; v_add_u32 v3, s45, v3; v_xor_b32 v8, 0x80, v3".replace("; ", chr(10)) if kx else ""}
{f"s_bfe_u32 s45, {'s36' if hp > 8 else 's2'}, {0x10000 + (hp % 8)}; s_lshl_b32 s45, s45, 17; s_add_u32 s44, s44, s45; s_xor_b32 s45, s44, 0x20000".replace("; ", chr(10)) if hp else f"s_add_u32 s45, s44, {[0, 0x4000, 0x20000][il]}"}
{WOB}
s_waitcnt lgkmcnt(0)
s_load_dword s30, s[28:29], 0
s_add_u32 s70, s6, s45
s_addc_u32 s71, s7, 0
s_add_u32 s6, s6, s44
s_addc_u32 s7, s7, 0
s_add_u32 s72, s8, s45
s_addc_u32 s73, s9, 0
s_add_u32 s8, s8, s44
s_addc_u32 s9, s9, 0
""")
    if xb: a("s_barrier")
    if not early: a("s_barrier")
    issue_upto(W0)
    if early: a("s_barrier")
    a(f"""s_branch L_A
L_C0:
{"s_getpc_b64 s[60:61]; s_and_b32 s60, s60, 0xffffff00; v_lshlrev_b32 v16, 3, v2; v_mov_b32 v17, s61; v_min_u32 v16, CODELEN, v16; v_add_co_u32 v16, vcc, s60, v16; v_addc_co_u32 v17, vcc, 0, v17, vcc; s_cmp_ge_u32 s36, 10; s_cbranch_scc1 L_nopf; global_load_dword v18, v[16:17], off; L_nopf:".replace("; ", chr(10)) if pf else ""}
v_mov_b32 v12, {CNT}
v_mov_b32 v14, 0
v_mov_b32 v15, 0
ds_write_b64 v12, v[14:15]
ds_write_b64 v12, v[14:15] offset:8
v_cmp_gt_u32 vcc, 0xE00, v2
{chr(10).join(f"v_mov_b32 v{r}, 0" for r in range(80, 96))}
""")
    pubbases("""s_mov_b64 exec, vcc
s_waitcnt lgkmcnt(0)
""" + ("s_barrier" if xb or cl == 1 else "") + """
global_load_dwordx4 v[80:83], v2, s[16:17]
global_load_dwordx4 v[84:87], v2, s[18:19]
global_load_dwordx4 v[88:91], v2, s[20:21]
s_mov_b64 exec, -1""")
    if cl == 2: a("s_barrier\ns_sleep 4")
    if prewarm: a(f"""s_cmp_ge_u32 s36, 10
s_cbranch_scc1 L_nowarm
global_store_dwordx4 v2, v[92:95], s[54:55]{FS}
global_store_dwordx4 v2, v[92:95], s[56:57] sc1
L_nowarm:""")
    a(f"""
{"" if cl else "s_barrier"}
s_branch L_C
L_B:
""")
    if bp: a(f"s_setprio {bp}")
    a(f"""
v_lshrrev_b32 v7, 3, v1
v_lshlrev_b32 v7, 4, v7
v_lshl_add_u32 v7, v6, 2, v7
v_and_b32 v8, 7, v1
v_lshlrev_b32 v8, 4, v8
v_lshl_add_u32 v4, v7, 13, v8
s_lshl_b32 s38, s34, 20
s_lshl_b32 s39, s32, 10
s_add_u32 s38, s38, s39
s_lshl_b32 s39, s35, 7
s_add_u32 s38, s38, s39
s_lshl_b32 s39, s36, 18
s_add_u32 s38, s38, s39
v_add_u32 v4, s38, v4
s_waitcnt lgkmcnt(0)
global_load_dwordx4 v[16:19], v2, s[4:5]
s_load_dword s30, s[28:29], 0
s_load_dword s31, s[22:23], 0
""")
    if xb: a("s_barrier")
    for i in range(4):
        a(f"global_load_dwordx4 v[{64+4*i}:{67+4*i}], v4, s[10:11]{NQ}" + ("\nv_add_u32 v4, 0x2000, v4" if i < 3 else ""))
    a(f"""
s_barrier
v_mov_b32 v12, {CNT}
s_mov_b32 s44, {f2u(1.0/512):#x}
s_mov_b32 s45, {f2u(1e-5):#x}
s_mov_b32 s42, 0x0c0c0400
s_mov_b32 s43, 0x04000c0c
s_mul_i32 s38, s36, {XS}
v_lshlrev_b32 v7, 4, v0
v_add_u32 v7, s38, v7
v_and_b32 v9, 3, v1
v_mul_u32_u24 v10, {XS}, v9
v_bfe_u32 v11, v1, 2, 1
v_lshl_add_u32 v10, v11, 5, v10
v_lshl_add_u32 v10, v6, 3, v10
s_lshl_b32 s38, s34, 8
s_lshl_b32 s39, s36, 6
s_add_u32 s38, s38, s39
v_add_u32 v10, s38, v10
v_mul_u32_u24 v11, 20, v6
v_add_lshl_u32 v11, v11, v1, 4
s_mul_i32 s38, s36, {QPW}
v_add_u32 v11, s38, v11
v_mov_b32 v50, 0
v_mov_b32 v51, 0
v_mov_b32 v52, 0
v_mov_b32 v53, 0
s_lshl_b32 s38, s32, 15
s_lshl_b32 s39, s33, 8
s_add_u32 s38, s38, s39
s_add_u32 s38, s38, {QG}
s_add_u32 s50, s28, s38
s_addc_u32 s51, s29, 0
v_lshlrev_b32 v54, 4, v1
v_lshl_add_u32 v54, v6, 13, v54
s_waitcnt vmcnt(4)
""")
    stamp(1)
    for p in range(4): a(f"v_lshlrev_b32 v{32+2*p}, 16, v{16+p}\nv_and_b32 v{33+2*p}, 0xffff0000, v{16+p}")
    a("""
v_pk_add_f32 v[40:41], v[32:33], v[34:35]
v_pk_add_f32 v[42:43], v[36:37], v[38:39]
v_pk_add_f32 v[40:41], v[40:41], v[42:43]
v_add_f32 v40, v40, v41
""")
    allreduce(40, 41)
    a("v_mul_f32 v40, s44, v40")
    for p in range(4): a(f"v_pk_add_f32 v[{42+2*p}:{43+2*p}], v[{32+2*p}:{33+2*p}], v[40:41] op_sel_hi:[1,0] neg_lo:[0,1] neg_hi:[0,1]")
    a("""
v_pk_mul_f32 v[42:43], v[42:43], v[42:43]
v_pk_fma_f32 v[42:43], v[44:45], v[44:45], v[42:43]
v_pk_fma_f32 v[42:43], v[46:47], v[46:47], v[42:43]
v_pk_fma_f32 v[42:43], v[48:49], v[48:49], v[42:43]
v_add_f32 v42, v42, v43
""")
    bfround(40, 40)
    a("s_nop 0")
    fill = []
    for p in range(4): fill.append(f"v_pk_add_f32 v[{32+2*p}:{33+2*p}], v[{32+2*p}:{33+2*p}], v[40:41] op_sel_hi:[1,0] neg_lo:[0,1] neg_hi:[0,1]")
    for p in range(8): fill.append(f"v_cvt_pk_bf16_f32 v{32+p}, 0, v{32+p}")
    fill += ["s_nop 0", "", "s_nop 0", ""]
    a(dpp("add", 42, 8))
    for r in (4, 2, 1): a(fill.pop(0) + "\n" + fill.pop(0) + "\n" + dpp("add", 42, r))
    for sw in (16, 32):
        a(f"v_mov_b32 v43, v42\n{fill.pop(0)}\n{fill.pop(0)}\nv_permlane{sw}_swap_b32 v42, v43\n{fill.pop(0)}\nv_add_f32 v42, v42, v43")
    a("v_mul_f32 v42, s44, v42")
    bfround(42, 42)
    a("v_add_f32 v42, s45, v42")
    bfround(42, 42)
    a("v_sqrt_f32 v42, v42\n" + fill.pop(0) + "\n" + fill.pop(0))
    bfround(42, 42)
    a("v_rcp_f32 v42, v42\n" + fill.pop(0) + "\n" + fill.pop(0))
    assert not fill
    for p in range(4): a(f"v_pk_mul_f32 v[{32+2*p}:{33+2*p}], v[{32+2*p}:{33+2*p}], v[42:43] op_sel_hi:[1,0]")
    for p in range(4): a(f"v_cvt_pk_bf16_f32 v{16+p}, v{32+2*p}, v{33+2*p}")
    a(f"ds_write_b128 v7, v[16:19] offset:{XN}\nv_mov_b32 v13, 1\ns_mov_b64 exec, 1\ns_waitcnt lgkmcnt(0)\nds_add_u32 v12, v13 offset:4\ns_mov_b64 exec, -1")
    a("s_mul_i32 s30, s30, 0x9E3779B1\ns_add_u32 s30, s30, 0x7F4A7C15\ns_or_b32 s30, s30, 1")
    if qwarm:
        a("s_cmp_lg_u32 s36, 0\ns_cbranch_scc1 L_noqw\ns_not_b32 s38, s30\nv_mov_b32 v40, s38\nv_mov_b32 v41, s38\nv_mov_b32 v42, s38\nv_mov_b32 v43, s38\nglobal_store_dwordx4 v54, v[40:43], s[50:51]" + FS + "\nL_noqw:")
    stamp(2)
    ldsspin("B")
    a(f"""
s_mov_b32 exec_lo, 0x00ff00ff
s_mov_b32 exec_hi, 0x00ff00ff
ds_read_b64 v[50:51], v10 offset:{XN}
s_not_b64 exec, exec
ds_read_b64 v[52:53], v10 offset:{XN}
s_mov_b64 exec, -1
s_waitcnt vmcnt(0)
""")
    stamp(3)
    for t in range(8):
        j = t // 2; sel = "s40" if t % 2 == 0 else "s41"
        a(f"v_perm_b32 v{80+2*t}, v{68+j}, v{64+j}, {sel}\nv_perm_b32 v{81+2*t}, v{76+j}, v{72+j}, {sel}")
    a("s_waitcnt lgkmcnt(0)")
    for j in range(4):
        a(f"v_mfma_f32_16x16x32_bf16 v[{96+4*j}:{99+4*j}], v[{80+4*j}:{83+4*j}], v[50:53], 0")
    a(f"""
v_bfe_u32 v14, v1, 1, 2
v_mul_u32_u24 v14, 81, v14
v_lshrrev_b32 v15, 3, v1
v_mul_u32_u24 v15, 20, v15
v_add3_u32 v14, v14, v15, v6
v_and_b32 v15, 1, v1
v_lshl_add_u32 v14, v15, 3, v14
v_lshlrev_b32 v14, 4, v14
""")
    for j in range(4):
        a(f"ds_write_b128 v11, v[{96+4*j}:{99+4*j}] offset:{QP+81*16*j}")
    a(f"""
v_mov_b32 v13, 1
s_mov_b64 exec, 1
s_waitcnt lgkmcnt(0)
ds_add_rtn_u32 v13, v12, v13
s_mov_b64 exec, -1
s_waitcnt lgkmcnt(0)
v_readfirstlane_b32 s38, v13
s_cmp_lg_u32 s38, 3
s_cbranch_scc1 L_noqpub
""")
    for s in range(8):
        a(f"ds_read_b128 v[{64+4*s}:{67+4*s}], v14 offset:{QP+QPW*(s//2)+(s%2)*44*16}")
    for s in range(4):
        a(f"s_waitcnt lgkmcnt({6-2*s})")
        a(f"v_pk_add_f32 v[{64+8*s}:{65+8*s}], v[{64+8*s}:{65+8*s}], v[{68+8*s}:{69+8*s}]\nv_pk_add_f32 v[{66+8*s}:{67+8*s}], v[{66+8*s}:{67+8*s}], v[{70+8*s}:{71+8*s}]")
    for (x, y) in ((64, 72), (80, 88), (64, 80)):
        a(f"v_pk_add_f32 v[{x}:{x+1}], v[{x}:{x+1}], v[{y}:{y+1}]\nv_pk_add_f32 v[{x+2}:{x+3}], v[{x+2}:{x+3}], v[{y+2}:{y+3}]")
    pack24(64)
    a("global_store_dwordx4 v54, v[64:67], s[50:51]" + FS)
    if fast: a(f"v_add_u32 v54, {FBQ}, v54\nglobal_store_dwordx4 v54, v[64:67], s[50:51] sc1")
    if fl: a("v_mov_b32 v13, 1\ns_mov_b64 exec, 1\nds_add_u32 v12, v13\ns_mov_b64 exec, -1")
    a("L_noqpub:")
    stamp(4)
    pubbases()
    a(f"""
v_lshrrev_b32 v10, 5, v0
v_lshlrev_b32 v10, 12, v10
v_and_b32 v11, 31, v0
v_lshl_add_u32 v10, v11, 4, v10
s_lshl_b32 s38, s32, 2
s_add_u32 s38, s38, s34
s_lshl_b32 s38, s38, 13
s_lshl_b32 s39, s36, 9
s_add_u32 s38, s38, s39
s_add_u32 s38, s38, {QG}
s_add_u32 s50, s28, s38
s_addc_u32 s51, s29, 0
v_bfe_u32 v11, v0, 3, 2
v_lshlrev_b32 v11, 6, v11
v_lshrrev_b32 v12, 5, v0
v_lshl_add_u32 v11, v12, 5, v11
v_and_b32 v12, 7, v0
v_lshl_add_u32 v11, v12, 1, v11
s_mul_i32 s38, s36, {QS}
v_add_u32 v11, s38, v11
v_mov_b32 v15, 0xffffff00
""")
    def qpost(R):
        for r in range(8): a(f"v_and_b32 v{16+r}, v15, v{R+r}")
    if qn:
        ppoll("q", 2048, qs0, qd, True, FBQ, [64, 72, 80, 88][:qn], 44, qpost)
    else:
        poll("q", 2048, qs0, qs, True, FBQ, (lambda: a(f"v_mov_b32 v12, {CNT}\nv_mov_b32 v13, 1\ns_mov_b64 exec, 1\nds_add_u32 v12, v13 offset:12\ns_mov_b64 exec, -1")) if f2 else None); qpost(16)
    a(f"""
v_pk_add_f32 v[16:17], v[16:17], v[20:21]
v_pk_add_f32 v[18:19], v[18:19], v[22:23]
s_nop 1
v_permlane32_swap_b32 v16, v18
v_permlane32_swap_b32 v17, v19
s_nop 0
v_pk_add_f32 v[16:17], v[16:17], v[18:19]
v_cvt_pk_bf16_f32 v16, v16, v17
ds_write_b16 v11, v16 offset:{QQ}
ds_write_b16_d16_hi v11, v16 offset:{QQ+16}
v_lshrrev_b32 v4, 2, v1
v_lshlrev_b32 v4, 5, v4
v_mov_b32 v12, {CNT}
v_mov_b32 v13, 1
v_mov_b32 v43, s30
""")
    if qb: a("s_waitcnt lgkmcnt(0)")
    else: a("s_mov_b64 exec, 1\ns_waitcnt lgkmcnt(0)\nds_add_u32 v12, v13 offset:8\ns_mov_b64 exec, -1")
    stamp(5)
    if qb: a("s_barrier")
    a("s_cmp_eq_u32 s36, 2\ns_cbranch_scc1 L_final")
    a("s_cmp_eq_u32 s36, 3\ns_cbranch_scc1 L_B3")
    if bpre: ldsspin("M", 12, 12)
    if prio: a("s_setprio 3")
    if bpre:
        a(f"""
ds_read_b128 v[8:11], v4 offset:{ML}
ds_read_b128 v[12:15], v4 offset:{ML+16}
s_waitcnt lgkmcnt(0)
v_max3_f32 v42, v8, v10, v12
v_max_f32 v42, v42, v14
v_sub_f32 v8, v8, v42
v_sub_f32 v10, v10, v42
v_sub_f32 v12, v12, v42
v_sub_f32 v14, v14, v42
v_exp_f32 v8, v8
v_exp_f32 v10, v10
v_exp_f32 v12, v12
v_exp_f32 v14, v14
v_mul_f32 v9, v8, v9
v_fmac_f32 v9, v10, v11
v_fmac_f32 v9, v12, v13
v_fmac_f32 v9, v14, v15
v_rcp_f32 v34, v9
v_log_f32 v35, v9
v_mul_f32 v8, v8, v34
v_mul_f32 v10, v10, v34
v_mul_f32 v12, v12, v34
v_mul_f32 v14, v14, v34
v_add_f32 v42, v42, v35
s_barrier
""")
        for w in range(4): a(f"ds_read_b128 v[{16+4*w}:{19+4*w}], v2 offset:{OP+2048*w}")
        stamp(6)
        a("""
s_waitcnt lgkmcnt(3)
v_pk_mul_f32 v[16:17], v[16:17], v[8:9] op_sel_hi:[1,0]
v_pk_mul_f32 v[18:19], v[18:19], v[8:9] op_sel_hi:[1,0]
s_waitcnt lgkmcnt(2)
v_pk_fma_f32 v[16:17], v[20:21], v[10:11], v[16:17] op_sel_hi:[1,0,1]
v_pk_fma_f32 v[18:19], v[22:23], v[10:11], v[18:19] op_sel_hi:[1,0,1]
s_waitcnt lgkmcnt(1)
v_pk_fma_f32 v[16:17], v[24:25], v[12:13], v[16:17] op_sel_hi:[1,0,1]
v_pk_fma_f32 v[18:19], v[26:27], v[12:13], v[18:19] op_sel_hi:[1,0,1]
s_waitcnt lgkmcnt(0)
v_pk_fma_f32 v[16:17], v[28:29], v[14:15], v[16:17] op_sel_hi:[1,0,1]
v_pk_fma_f32 v[18:19], v[30:31], v[14:15], v[18:19] op_sel_hi:[1,0,1]
v_cvt_pk_bf16_f32 v40, v16, v17
v_cvt_pk_bf16_f32 v41, v18, v19
""")
    else:
      a(f"""
s_barrier
ds_read_b128 v[8:11], v4 offset:{ML}
ds_read_b128 v[12:15], v4 offset:{ML+16}
""")
      for w in range(4): a(f"ds_read_b128 v[{16+4*w}:{19+4*w}], v2 offset:{OP+2048*w}")
      stamp(6)
      a("""
s_waitcnt lgkmcnt(4)
v_max3_f32 v42, v8, v10, v12
v_max_f32 v42, v42, v14
v_sub_f32 v8, v8, v42
v_sub_f32 v10, v10, v42
v_exp_f32 v8, v8
v_sub_f32 v12, v12, v42
v_exp_f32 v10, v10
v_sub_f32 v14, v14, v42
v_exp_f32 v12, v12
v_mul_f32 v9, v8, v9
v_exp_f32 v14, v14
v_fmac_f32 v9, v10, v11
s_waitcnt lgkmcnt(2)
v_pk_mul_f32 v[16:17], v[16:17], v[8:9] op_sel_hi:[1,0]
v_fmac_f32 v9, v12, v13
v_pk_mul_f32 v[18:19], v[18:19], v[8:9] op_sel_hi:[1,0]
v_fmac_f32 v9, v14, v15
v_pk_fma_f32 v[16:17], v[20:21], v[10:11], v[16:17] op_sel_hi:[1,0,1]
v_rcp_f32 v34, v9
v_pk_fma_f32 v[18:19], v[22:23], v[10:11], v[18:19] op_sel_hi:[1,0,1]
v_log_f32 v35, v9
s_waitcnt lgkmcnt(0)
v_pk_fma_f32 v[16:17], v[24:25], v[12:13], v[16:17] op_sel_hi:[1,0,1]
v_pk_fma_f32 v[18:19], v[26:27], v[12:13], v[18:19] op_sel_hi:[1,0,1]
v_pk_fma_f32 v[16:17], v[28:29], v[14:15], v[16:17] op_sel_hi:[1,0,1]
v_pk_fma_f32 v[18:19], v[30:31], v[14:15], v[18:19] op_sel_hi:[1,0,1]
v_pk_mul_f32 v[16:17], v[16:17], v[34:35] op_sel_hi:[1,0]
v_pk_mul_f32 v[18:19], v[18:19], v[34:35] op_sel_hi:[1,0]
v_add_f32 v42, v42, v35
v_cvt_pk_bf16_f32 v40, v16, v17
v_cvt_pk_bf16_f32 v41, v18, v19
""")
    a("global_store_dwordx4 v2, v[40:43], s[54:55]" + FS)
    if ofd: a(f"s_sleep {ofd}")
    if fast: a(f"s_add_u32 s54, s54, {FBO}\ns_addc_u32 s55, s55, 0\nglobal_store_dwordx4 v2, v[40:43], s[54:55] sc1")
    stamp(7)
    a("s_barrier")
    for w in range(4): a(f"ds_read_b128 v[{16+4*w}:{19+4*w}], v2 offset:{WP+2048*w}")
    stamp(8)
    a("""
s_waitcnt lgkmcnt(2)
v_pk_add_f32 v[16:17], v[16:17], v[20:21]
v_pk_add_f32 v[18:19], v[18:19], v[22:23]
s_waitcnt lgkmcnt(0)
v_pk_add_f32 v[24:25], v[24:25], v[28:29]
v_pk_add_f32 v[26:27], v[26:27], v[30:31]
v_pk_add_f32 v[16:17], v[16:17], v[24:25]
v_pk_add_f32 v[18:19], v[18:19], v[26:27]
""")
    pack24(16)
    a("global_store_dwordx4 v2, v[16:19], s[56:57] sc1")
    if cln: a(f"s_sleep {cln}\ns_sub_u32 s54, s54, {FBO}\ns_subb_u32 s55, s55, 0\nglobal_store_dwordx4 v2, v[40:43], s[54:55] sc1")
    stamp(9)
    if stamps:
        a("L_flushB:")
        flush_stamps(range(0, 12))
    a("s_endpgm")
    a("L_B3:\ns_barrier\ns_barrier\n" + ("s_branch L_flushB" if stamps else "s_endpgm"))
    a(f"""L_final:
v_and_b32 v8, 1, v0
v_lshl_add_u32 v8, v6, 1, v8
v_lshl_add_u32 v3, v8, 1, s47
global_load_ushort v5, v3, s[4:5]
v_lshlrev_b32 v8, 4, v8
s_bfe_u32 s38, s47, 0x20008
s_lshl_b32 s38, s38, 17
s_lshr_b32 s39, s32, 1
s_lshl_b32 s39, s39, 8
s_add_u32 s38, s38, s39
s_and_b32 s39, s47, 0xf0
s_add_u32 s38, s38, s39
s_add_u32 s38, s38, {FG}
s_add_u32 s50, s28, s38
s_addc_u32 s51, s29, 0
v_lshlrev_b32 v10, 11, v0
s_lshl_b32 s31, s31, 16
s_barrier
ds_read_b128 v[32:35], v8 offset:{GG}
s_waitcnt lgkmcnt(0)
v_add_f32 v32, v32, v33
v_add_f32 v34, v34, v35
v_add_f32 v32, v32, v34
""")
    bfround(32, 32)
    a("v_add_f32 v32, s31, v32")
    bfround(32, 32)
    a(f"""
v_mul_f32 v33, {f2u(-LOG2E):#x}, v32
v_exp_f32 v33, v33
s_nop 0
v_add_f32 v33, 1.0, v33
v_rcp_f32 v33, v33
s_nop 0
v_mul_f32 v32, v32, v33
""")
    bfround(32, 32)
    a("s_waitcnt vmcnt(0)\nv_lshlrev_b32 v4, 16, v5\ns_nop 1\nv_mov_b32_dpp v33, v32 quad_perm:[1,0,3,2] row_mask:0xf bank_mask:0xf\nv_mov_b32_dpp v5, v4 quad_perm:[1,0,3,2] row_mask:0xf bank_mask:0xf\ns_barrier")
    if fm:
        mpoll("f", 1024, fs0, fd, True, 0, [96, 104, 112][:fm], 44)
    elif fn:
        ppoll("f", 1024, fs0, fd, True, 0, [96, 104, 112, 120][:fn], 44, qpost)
    else:
        poll("f", 1024, fs0, fs, True); qpost(16)
    stamp(10)
    reduce8(16, 20, False)
    a("""
v_cvt_pk_bf16_f32 v16, 0, v16
v_cvt_pk_bf16_f32 v17, 0, v17
s_mov_b32 exec_lo, 0x00010001
v_pk_mul_f32 v[16:17], v[16:17], v[32:33]
s_mov_b32 exec_hi, 0x00010001
v_cvt_pk_bf16_f32 v16, 0, v16
v_cvt_pk_bf16_f32 v17, 0, v17
v_pk_add_f32 v[16:17], v[16:17], v[4:5]
v_cvt_pk_bf16_f32 v16, v16, v17
global_store_dword v3, v16, s[24:25]
s_cmp_lg_u32 s2, 0
s_cbranch_scc1 L_noep
s_mov_b64 exec, 1
v_mov_b32 v0, 0
v_mov_b32 v1, s30
global_store_dword v0, v1, s[28:29]
L_noep:
""")
    if stamps:
        a("s_waitcnt vmcnt(0)")
        stamp(11)
        a("s_branch L_flushB")
    a("s_endpgm")

    a("L_A:")
    if ap: a(f"s_setprio {ap}")
    stamp(1)
    a(f"""
v_lshrrev_b32 v9, 2, v1
v_mul_u32_u24 v7, {QS}, v9
v_lshl_add_u32 v7, v6, 4, v7
{"s_and_b32 s38, s37, 1; s_lshl_b32 s38, s38, 7; s_xor_b32 s39, s38, 0x80; v_add_u32 v2, s39, v7; v_add_u32 v7, s38, v7".replace("; ", chr(10)) if kx else ""}
s_lshl_b32 s38, s37, 11
v_lshlrev_b32 v11, 4, v0
v_add_u32 v11, s38, v11
s_lshl_b32 s38, s37, 3
v_lshlrev_b32 v12, 5, v9
v_add_u32 v12, s38, v12
v_and_b32 v13, 3, v1
v_lshlrev_b32 v10, 12, v13
v_lshl_add_u32 v10, v9, 14, v10
v_lshl_add_u32 v10, v6, 4, v10
s_lshl_b32 s66, s32, 16
s_lshl_b32 s67, s46, 7
s_add_u32 s66, s66, s67
s_lshr_b32 s67, s37, 1
s_lshl_b32 s67, s67, 10
s_add_u32 s66, s66, s67
s_and_b32 s67, s37, 1
s_lshl_b32 s67, s67, 6
s_add_u32 s66, s66, s67
s_add_u32 s66, s66, {OG}
s_add_u32 s50, s28, s66
s_addc_u32 s51, s29, 0
s_mov_b32 s58, 0x11111111
s_mov_b32 s59, 0x11111111
s_mov_b32 s60, 0x22222222
s_mov_b32 s61, 0x22222222
s_mov_b32 s62, 0x44444444
s_mov_b32 s63, 0x44444444
s_mov_b32 s64, 0x88888888
s_mov_b32 s65, 0x88888888
s_mov_b32 s68, {f2u(SCALE):#x}
s_mov_b32 s69, {f2u(LOG2E):#x}
""")
    d = 1
    if fl:
        a(f"v_mov_b32 v14, {CNT}\ns_sleep {fsl}")
        if fl[0] > W0: ldsspin("F", 0, 14, f1)
        stamp(2); issue_upto(fl[0])
        if f2: ldsspin("G", 12, 14, 4); issue_upto(f2)
        stamp(3)
        for (dn, up) in fl[1:]: wait_done(dn); issue_upto(up)
        assert st["issued"] == NL
    elif rate:
        stamp(2); stamp(3)
        k0, k = rate
        a(f"s_sleep {k0}")
        while st["issued"] < NL:
            wait_done(st["issued"] + 1 - W); issue_upto(st["issued"] + 1)
            if st["issued"] < NL: a(f"s_sleep {k}")
    else:
        wait_done(1); stamp(2)
    if sched:
        stamp(3)
        for (dn, up) in sched: wait_done(dn); issue_upto(up)
        assert st["issued"] == NL
    issue_upto(W + 1)
    while st["issued"] < NL:
        d += step
        wait_done(d); issue_upto(W + d)
        if d - step < 8 + SH <= d: stamp(3)
    stamp(4)
    a("s_waitcnt lgkmcnt(0)\ns_mul_i32 s30, s30, 0x9E3779B1\ns_add_u32 s30, s30, 0x7F4A7C15\ns_or_b32 s30, s30, 1")
    wait_done(12 + SH)
    for t in range(8):
        j = t // 2; sel = "s40" if t % 2 == 0 else "s41"
        a(f"v_perm_b32 v{FR+4*t}, v{VR+4+j}, v{VR+j}, {sel}\nv_perm_b32 v{FR+1+4*t}, v{VR+12+j}, v{VR+8+j}, {sel}")
    if vp2:
        wait_done(NV)
        if wod == 6: issue_upto(20, 20)
        for t in range(8):
            j = t // 2; sel = "s40" if t % 2 == 0 else "s41"
            a(f"v_perm_b32 v{FR+2+4*t}, v{VR+20+j}, v{VR+16+j}, {sel}\nv_perm_b32 v{FR+3+4*t}, v{VR+28+j}, v{VR+24+j}, {sel}")
    a(f"v_mov_b32 v14, {CNT}\nv_mov_b32 v13, 1")
    if prio: a("s_setprio 2")
    if qb: a("s_barrier")
    else: ldsspin("A", 8, 14); a("v_mov_b32 v13, 1")
    for s in range(4):
        a(f"ds_read_b128 v[{QR+4*s}:{QR+3+4*s}], v7 offset:{QQ+64*s}")
    stamp(6)
    if wod == 1: issue_upto(20, 20)
    for s in range(4):
        a(f"s_waitcnt lgkmcnt({3-s})")
        for t in range(2):
            r = KR + (t*4+s)*4
            c = "0" if s == 0 else f"v[{SR+4*t}:{SR+3+4*t}]"
            a(f"v_mfma_f32_16x16x32_bf16 v[{SR+4*t}:{SR+3+4*t}], v[{r}:{r+3}], v[{QR+4*s}:{QR+3+4*s}], {c}")
    M, L, T = 156, 157, 158
    def rnd(p): return f"v_cvt_pk_bf16_f32 v{SR+p}, 0, v{SR+p}"
    def scl(p): return f"v_pk_mul_f32 v[{SR+2*p}:{SR+1+2*p}], v[{SR+2*p}:{SR+1+2*p}], s[68:69] op_sel_hi:[1,0]"
    a(f"""
s_nop 6
v_max3_f32 v{M}, v{SR}, v{SR+1}, v{SR+2}
v_max3_f32 v{L}, v{SR+3}, v{SR+4}, v{SR+5}
v_max3_f32 v{M}, v{M}, v{SR+6}, v{SR+7}
v_max_f32 v{M}, v{M}, v{L}
v_mov_b32 v{L}, v{M}
{rnd(0)}
{rnd(1)}
v_permlane16_swap_b32 v{M}, v{L}
{rnd(2)}
{rnd(3)}
v_max_f32 v{M}, v{M}, v{L}
v_mov_b32 v{L}, v{M}
{rnd(4)}
{rnd(5)}
v_permlane32_swap_b32 v{M}, v{L}
{rnd(6)}
{rnd(7)}
v_max_f32 v{M}, v{M}, v{L}
{scl(0)}
v_cvt_pk_bf16_f32 v{M}, 0, v{M}
{scl(1)}
v_mul_f32 v{M}, s68, v{M}
{scl(2)}
v_cvt_pk_bf16_f32 v{M}, 0, v{M}
{scl(3)}
v_mul_f32 v{M}, s69, v{M}
""")
    for p in range(8): a(rnd(p))
    for p in range(4): a(f"v_pk_fma_f32 v[{SR+2*p}:{SR+1+2*p}], v[{SR+2*p}:{SR+1+2*p}], s[68:69], v[{M}:{M+1}] op_sel:[0,1,0] op_sel_hi:[1,1,0] neg_lo:[0,0,1] neg_hi:[0,0,1]")
    for p in range(8): a(f"v_exp_f32 v{SR+p}, v{SR+p}")
    if wod == 3: issue_upto(20, 20)
    for p in range(4): a(f"v_cvt_pk_bf16_f32 v{PR+p}, v{SR+2*p}, v{SR+1+2*p}")
    cm = [f"v_cndmask_b32 v{QR+4*dl+p}, 0, v{PR+p}, s[{58+2*dl}:{59+2*dl}]" for dl in range(4) for p in range(4)]
    a(f"""
v_pk_add_f32 v[{SR}:{SR+1}], v[{SR}:{SR+1}], v[{SR+2}:{SR+3}]
v_pk_add_f32 v[{SR+4}:{SR+5}], v[{SR+4}:{SR+5}], v[{SR+6}:{SR+7}]
v_pk_add_f32 v[{SR}:{SR+1}], v[{SR}:{SR+1}], v[{SR+4}:{SR+5}]
v_add_f32 v{L}, v{SR}, v{SR+1}
v_mov_b32 v{T}, v{L}
""")
    a("\n".join(cm[:4]))
    a(f"v_permlane16_swap_b32 v{L}, v{T}\n{cm[4]}\nv_add_f32 v{L}, v{L}, v{T}\nv_mov_b32 v{T}, v{L}")
    a("\n".join(cm[5:8]))
    a(f"v_permlane32_swap_b32 v{L}, v{T}\n{cm[8]}\nv_add_f32 v{L}, v{L}, v{T}")
    a(f"s_mov_b64 exec, 0x1111\nds_write_b64 v12, v[{M}:{L}] offset:{ML}")
    if bpre: a("s_mov_b64 exec, 1\nds_add_u32 v14, v13 offset:12")
    a("s_mov_b64 exec, -1")
    a("\n".join(cm[9:]))
    stamp(7)
    if wod == 4: issue_upto(20, 20)
    wait_done(NV)
    stamp(5)
    if wod == 2: issue_upto(20, 20)
    def pvm(t):
        c = "0" if t % 4 == 0 else f"v[{16+4*(t//4)}:{19+4*(t//4)}]"
        return f"v_mfma_f32_16x16x32_bf16 v[{16+4*(t//4)}:{19+4*(t//4)}], v[{FR+4*t}:{FR+3+4*t}], v[{QR+4*(t%4)}:{QR+3+4*(t%4)}], {c}"
    if vp2:
        for t in (0, 4, 1, 5, 2, 6, 3, 7): a(pvm(t))
        a(f"s_nop 6\nds_write_b128 v11, v[16:19] offset:{OP}")
    else:
        for t in range(8):
            j = t // 2; sel = "s40" if t % 2 == 0 else "s41"
            a(f"v_perm_b32 v{FR+2+4*t}, v{VR+20+j}, v{VR+16+j}, {sel}\nv_perm_b32 v{FR+3+4*t}, v{VR+28+j}, v{VR+24+j}, {sel}")
            if t >= 1: a(pvm(t-1))
        a(f"ds_write_b128 v11, v[16:19] offset:{OP}")
        a(pvm(7))
        a("s_nop 7")
    a(f"""
ds_write_b128 v11, v[20:23] offset:{OP+1024}
""")
    if wod == 5: issue_upto(20, 20)
    a("s_waitcnt lgkmcnt(0)")
    stamp(8)
    a("s_barrier")
    def woperm():
        a(f"s_waitcnt vmcnt({2 if opre else 0})")
        for t in range(8):
            j = t // 2; sel = "s40" if t % 2 == 0 else "s41"
            a(f"v_perm_b32 v{FR+2*t}, v{WR+4+j}, v{WR+j}, {sel}\nv_perm_b32 v{FR+1+2*t}, v{WR+12+j}, v{WR+8+j}, {sel}")
    if not opre: woperm()
    def dq(d, k): return f"v_add_f32_dpp v{d}, v{d}, v{d} quad_perm:{['[1,0,3,2]', '[2,3,0,1]'][k]} row_mask:0xf bank_mask:0xf"
    def opost(R):
        a(f"""
v_max_f32 v24, v{R+2}, v{R+6}
v_lshlrev_b32 v26, 16, v{R}
v_and_b32 v27, 0xffff0000, v{R}
v_max_f32_dpp v24, v24, v24 quad_perm:[1,0,3,2] row_mask:0xf bank_mask:0xf
v_lshlrev_b32 v28, 16, v{R+1}
v_and_b32 v29, 0xffff0000, v{R+1}
v_max_f32_dpp v24, v24, v24 quad_perm:[2,3,0,1] row_mask:0xf bank_mask:0xf
v_lshlrev_b32 v30, 16, v{R+4}
v_sub_f32 v18, v{R+2}, v24
v_sub_f32 v22, v{R+6}, v24
v_exp_f32 v18, v18
v_and_b32 v31, 0xffff0000, v{R+4}
v_exp_f32 v22, v22
v_lshlrev_b32 v32, 16, v{R+5}
v_and_b32 v33, 0xffff0000, v{R+5}
""")
    if om:
        mpoll("o", 2048, os0, od, False, FBO, [48, 56, 64][:om], 0, woperm); opost(16)
    elif on:
        ppoll("o", 2048, os0, od, False, FBO, [48, 56, 64, 72][:on], 0, opost)
    else:
        poll("o", 2048, os0, os_, False, FBO, woperm if opre else None); opost(16)
    stamp(9)
    a(f"""
v_add_f32 v24, v18, v22
v_pk_mul_f32 v[26:27], v[26:27], v[18:19] op_sel_hi:[1,0]
v_pk_mul_f32 v[28:29], v[28:29], v[18:19] op_sel_hi:[1,0]
v_add_f32_dpp v24, v24, v24 quad_perm:[1,0,3,2] row_mask:0xf bank_mask:0xf
v_pk_fma_f32 v[26:27], v[30:31], v[22:23], v[26:27] op_sel_hi:[1,0,1]
v_pk_fma_f32 v[28:29], v[32:33], v[22:23], v[28:29] op_sel_hi:[1,0,1]
v_add_f32_dpp v24, v24, v24 quad_perm:[2,3,0,1] row_mask:0xf bank_mask:0xf
""")
    a(dq(26, 0) + "\nv_rcp_f32 v24, v24")
    for e in (27, 28, 29): a(dq(e, 0))
    for e in (26, 27, 28, 29): a(dq(e, 1))
    a("""
v_pk_mul_f32 v[26:27], v[26:27], v[24:25] op_sel_hi:[1,0]
v_pk_mul_f32 v[28:29], v[28:29], v[24:25] op_sel_hi:[1,0]
v_cvt_pk_bf16_f32 v8, v26, v27
v_cvt_pk_bf16_f32 v9, v28, v29
""")
    for dl in range(4):
        for p in range(2):
            a(f"v_cndmask_b32 v{40+2*dl+p}, 0, v{8+p}, s[{58+2*dl}:{59+2*dl}]")
    for dl in (0, 2):
        for j in range(2):
            t = 4*j + dl
            c = "0" if dl == 0 else f"v[{128+4*j}:{131+4*j}]"
            a(f"v_mfma_f32_16x16x32_bf16 v[{128+4*j}:{131+4*j}], v[{40+2*dl}:{43+2*dl}], v[{FR+2*t}:{FR+3+2*t}], {c}")
    a(f"""
s_nop 6
ds_write_b128 v11, v[128:131] offset:{WP}
ds_write_b128 v11, v[132:135] offset:{WP+1024}
s_waitcnt lgkmcnt(0)
""")
    stamp(10)
    a("s_barrier")
    if stamps:
        stamp(11)
        flush_stamps(range(0, 12))
    a("s_endpgm")
    a(f"""L_C:
s_lshr_b32 s38, s32, 1
s_mul_i32 s38, s38, {XS}
v_lshl_add_u32 v7, v1, 4, s38
s_and_b32 s39, s47, 0x3ff
s_add_u32 s38, s38, s39
v_and_b32 v8, 7, v0
v_lshl_add_u32 v8, v8, 1, s38
s_mov_b32 s44, {f2u(1.0/512):#x}
s_mov_b32 s45, {f2u(1e-5):#x}
s_mov_b32 s48, 0x3f803f80
v_mov_b32 v24, 0
v_mov_b32 v25, 0
v_mov_b32 v26, 0
v_mov_b32 v27, 0
s_sleep 8
""")
    stamp(1)
    ldsspin("C")
    stamp(2)
    for i in range(4): a(f"ds_read_b128 v[{56+4*i}:{59+4*i}], v7 offset:{XN+256*i}")
    a(f"ds_read_u16 v28, v8 offset:{XN}")
    a("s_waitcnt lgkmcnt(0)")
    for i in range(16):
        a(f"v_dot2c_f32_bf16 v{24+(i%2)}, s48, v{56+i}\nv_dot2c_f32_bf16 v{26+(i%2)}, v{56+i}, v{56+i}")
    a("v_lshlrev_b32 v28, 16, v28\ns_nop 1")
    a("v_add_f32 v24, v24, v25\nv_add_f32 v26, v26, v27")
    for r in (8, 4, 2, 1): a("s_nop 0\n" + dpp("add", 24, r) + "\n" + dpp("add", 26, r))
    a("""
v_mul_f32 v24, s44, v24
v_mul_f32 v26, s44, v26
v_fma_f32 v26, -v24, v24, v26
v_max_f32 v26, 0, v26
""")
    bfround(24, 24); bfround(26, 26)
    a("v_add_f32 v26, s45, v26\nv_sub_f32 v28, v28, v24")
    bfround(26, 26)
    a("v_sqrt_f32 v26, v26")
    bfround(28, 28); bfround(26, 26)
    a("v_rcp_f32 v26, v26\ns_nop 0\nv_mul_f32 v28, v28, v26")
    bfround(28, 28)
    a("s_cmp_ge_u32 s36, 10\ns_cbranch_scc1 L_cw0\ns_waitcnt vmcnt(2)\ns_branch L_cw1\nL_cw0:\ns_waitcnt vmcnt(0)\nL_cw1:" if prewarm else "s_waitcnt vmcnt(0)")
    for (src, dst) in ((80, 32), (84, 40), (88, 48)):
        for p in range(4): a(f"v_lshlrev_b32 v{dst+2*p}, 16, v{src+p}\nv_and_b32 v{dst+1+2*p}, 0xffff0000, v{src+p}")
    for b in range(8): a(f"v_readlane_b32 s{64+b}, v28, {b}")
    a(f"s_mov_b32 s44, {f2u(C1):#x}\nv_mov_b32 v14, {f2u(C0):#x}")
    stamp(3)
    U, T, Z = 56, 64, 72
    a("s_mov_b32 s46, 0\nL_gate:\ns_mov_b32 m0, s46\ns_nop 0\ns_movrels_b32 s72, s64")
    for p in range(4): a(f"v_pk_fma_f32 v[{U+2*p}:{U+1+2*p}], s[72:73], v[{32+2*p}:{33+2*p}], v[{40+2*p}:{41+2*p}] op_sel_hi:[0,1,1]")
    for p in range(4): a(f"v_pk_mul_f32 v[{T+2*p}:{T+1+2*p}], v[{U+2*p}:{U+1+2*p}], v[{U+2*p}:{U+1+2*p}]")
    for p in range(4): a(f"v_pk_fma_f32 v[{T+2*p}:{T+1+2*p}], v[{T+2*p}:{T+1+2*p}], s[44:45], v[14:15] op_sel_hi:[1,0,0]")
    for p in range(4): a(f"v_pk_mul_f32 v[{T+2*p}:{T+1+2*p}], v[{T+2*p}:{T+1+2*p}], v[{U+2*p}:{U+1+2*p}]")
    for p in range(8): a(f"v_exp_f32 v{T+p}, v{T+p}")
    for p in range(4): a(f"v_pk_mul_f32 v[{U+2*p}:{U+1+2*p}], v[{U+2*p}:{U+1+2*p}], v[{48+2*p}:{49+2*p}]")
    for p in range(4): a(f"v_pk_add_f32 v[{T+2*p}:{T+1+2*p}], v[{T+2*p}:{T+1+2*p}], 1.0 op_sel_hi:[1,0]")
    for p in range(8): a(f"v_rcp_f32 v{T+p}, v{T+p}")
    a(f"v_pk_mul_f32 v[{Z}:{Z+1}], v[{U}:{U+1}], v[{T}:{T+1}]")
    for p in range(1, 4): a(f"v_pk_fma_f32 v[{Z}:{Z+1}], v[{U+2*p}:{U+1+2*p}], v[{T+2*p}:{T+1+2*p}], v[{Z}:{Z+1}]")
    a(f"s_set_gpr_idx_on s46, gpr_idx(DST)\ns_nop 0\nv_add_f32 v16, v{Z}, v{Z+1}\ns_set_gpr_idx_off")
    a("s_add_u32 s46, s46, 1\ns_cmp_lt_u32 s46, 8\ns_cbranch_scc1 L_gate")
    reduce8(16, 20)
    a(f"""
v_and_b32 v8, 1, v0
v_lshl_add_u32 v8, v6, 1, v8
v_lshlrev_b32 v8, 4, v8
s_lshl_b32 s38, s37, 2
v_add_u32 v9, s38, v8
ds_write_b32 v9, v16 offset:{GG}
s_waitcnt vmcnt(0) lgkmcnt(0)
""")
    stamp(4)
    if stamps: a("s_barrier\ns_barrier" + ("\ns_barrier" if qb else ""))
    flush_stamps(range(0, 5))
    a("L_end:\ns_endpgm")
    return wrap(a.text().replace("CODELEN", "L_end-L_C0-4"), 256, 768, lds, 160)

if __name__ == "__main__":
    import ast
    open("k6.s", "w").write(gen(stamps=False))
    for arg in sys.argv[1:]:
        name, kw = arg.split("=", 1)
        open(name + ".s", "w").write(gen(**eval("dict(" + kw + ")")))
```

```python
import sys, math, struct
from asmlib import *

def f2u(x): return struct.unpack("<I", struct.pack("<f", x))[0]
LOG2E = 1.4426950408889634
C0 = -2.0 * LOG2E * math.sqrt(2.0 / math.pi)
C1 = C0 * 0.044715
SCALE = 128 ** -0.5

XS = 1088
XN = 0x0000; QP = 0x1200; QPW = 5184; QQ = 0x6400; QS = 320; OP = 0x6A00; ML = 0x8A00; WP = 0x8B00; GG = 0xAB00; CNT = 0xAC00
QG = 0x100; OG = 0x80100; FG = 0x100100

def gen(stamps=False, W=6, W0=4, step=2, NT=" nt", lds=44160, spin=200000, prewarm=True, qwarm=False, qs0=16, qs=4, os0=8, os_=1, fs0=18, fs=2, prio=True, fast=True, NF=16, NFQ=4, wod=2, ms=0, mp=0, rn=1, wk=3, wh=0, tt=0, NQ=' nt', NO=' nt', NK=' nt', cl=2, f1=5, vp2=0, qb=1, cln=0, fsf='', st4=1, fsl=2, f2=0, xb=0, spz=1, ap=0, fl=(12,(5,16)), om=0, fm=2, ofd=0, bpre=1, opf=0, opre=1, rate=None, bp=3, sched=None, pf=0, codelen=7168, il=2, vc=0, hp=0, kx=0, early=False, tlb=0, qn=0, qd=16, on=0, od=2, fn=2, fd=6):
    FBQ = 0x40000; FBO = 0x100000
    FS = fsf if fast else ' sc1'
    a = Asm()
    def stamp(i):
        if stamps: a(f"s_memrealtime s[{76+2*i}:{77+2*i}]")
    def flush_stamps(idx):
        if not stamps: return
        a("s_waitcnt lgkmcnt(0)\ns_mov_b64 exec, 1\ns_mul_i32 s3, s2, 12\ns_add_u32 s3, s3, s36\ns_lshl_b32 s3, s3, 7\ns_add_u32 s48, s28, s3\ns_addc_u32 s49, s29, 0\ns_add_u32 s48, s48, 0x8000000\ns_addc_u32 s49, s49, 0\nv_mov_b32 v0, 0")
        for i in idx:
            a(f"v_mov_b32 v2, s{76+2*i}\nv_mov_b32 v3, s{77+2*i}\nglobal_store_dwordx2 v0, v[2:3], s[48:49] offset:{8*i}")
    def dpp(op, d, r): return f"v_{op}_f32_dpp v{d}, v{d}, v{d} row_ror:{r} row_mask:0xf bank_mask:0xf"
    def allreduce(v, t, op="add"):
        for r in (8, 4, 2, 1): a("s_nop 1\n" + dpp(op, v, r))
        for sw in (16, 32):
            a(f"v_mov_b32 v{t}, v{v}\ns_nop 1\nv_permlane{sw}_swap_b32 v{v}, v{t}\ns_nop 0\nv_{op}_f32 v{v}, v{v}, v{t}")
    def reduce8(A, B, sel=True):
        for r in range(4): a(f"v_permlane32_swap_b32 v{A+r}, v{B+r}")
        for r in range(4): a(f"v_add_f32 v{A+r}, v{A+r}, v{B+r}")
        a("s_mov_b32 vcc_lo, 0xAAAAAAAA")
        a(f"v_permlane16_swap_b32 v{A}, v{A+2}\nv_permlane16_swap_b32 v{A+1}, v{A+3}\ns_mov_b32 vcc_hi, 0xAAAAAAAA")
        a(f"v_add_f32 v{A}, v{A}, v{A+2}\nv_add_f32 v{A+1}, v{A+1}, v{A+3}")
        for r in (8, 4, 2, 1):
            a("s_nop 0\n" + dpp("add", A, r) + "\n" + dpp("add", A+1, r))
        if sel: a(f"v_cndmask_b32 v{A}, v{A}, v{A+1}, vcc")
    def pack24(v):
        for r in range(4):
            if rn: a(f"v_add_u32 v{v+r}, 0x80, v{v+r}")
        for r in range(4): a(f"v_mov_b32_sdwa v{v+r}, s30 dst_sel:BYTE_0 dst_unused:UNUSED_PRESERVE src0_sel:BYTE_{r}")
        a("s_nop 0")
    def tag24(v, t, u):
        a(f"v_perm_b32 v{t}, v{v+1}, v{v}, s42\nv_perm_b32 v{u}, v{v+3}, v{v+2}, s43\nv_or_b32 v{t}, v{t}, v{u}")
    def bfround(d, s):
        a(f"v_cvt_pk_bf16_f32 v{d}, 0, v{s}")
    def ppoll(name, off2, s0, d, t24, FBK, sets, tmp, post):
        n = len(sets)
        def issue(r): a(f"global_load_dwordx4 v[{r}:{r+3}], v10, s[50:51] sc1\nglobal_load_dwordx4 v[{r+4}:{r+7}], v10, s[50:51] offset:{off2} sc1")
        if s0: a(f"s_sleep {s0}")
        a(f"s_mov_b32 s38, {spin}")
        for i, r in enumerate(sets):
            issue(r)
            if i < n - 1 and d: a(f"s_sleep {d}")
        a(f"L_{name}poll:")
        for i, r in enumerate(sets):
            a(f"s_waitcnt vmcnt({2*(n-1)})")
            if t24:
                tag24(r, tmp, tmp+1); tag24(r+4, tmp+2, tmp+3)
                a(f"v_cmp_ne_u32 vcc, s30, v{tmp}\nv_cmp_ne_u32 s[52:53], s30, v{tmp+2}")
            else:
                a(f"v_cmp_ne_u32 vcc, s30, v{r+3}\nv_cmp_ne_u32 s[52:53], s30, v{r+7}")
            a(f"s_or_b64 s[52:53], vcc, s[52:53]\ns_cbranch_scc0 L_{name}ok{i}")
            issue(r)
        if FBK and fast:
            a(f"s_cmp_eq_u32 s38, {spin-NFQ}\ns_cselect_b32 s39, {FBK}, 0\ns_add_u32 s50, s50, s39\ns_addc_u32 s51, s51, 0")
        a(f"s_sub_u32 s38, s38, 1\ns_cbranch_scc0 L_{name}poll")
        for i, r in list(enumerate(sets))[::-1]:
            a(f"L_{name}ok{i}:")
            post(r)
            if i > 0: a(f"s_branch L_{name}done")
        a(f"L_{name}done:")
    def mpoll(name, off2, s0, d, t24, FBK, sets, tmp, pre=None):
        n = len(sets)
        def issue(r): a(f"global_load_dwordx4 v[{r}:{r+3}], v10, s[50:51] sc1\nglobal_load_dwordx4 v[{r+4}:{r+7}], v10, s[50:51] offset:{off2} sc1")
        if s0: a(f"s_sleep {s0}")
        a(f"s_mov_b32 s38, {spin}\ns_mov_b64 s[66:67], -1")
        for i, r in enumerate(sets):
            issue(r)
            if i == 0 and pre: pre()
            if i < n - 1 and d: a(f"s_sleep {d}")
        a(f"L_{name}poll:")
        for i, r in enumerate(sets):
            a(f"s_waitcnt vmcnt({2*(n-1)})")
            if t24:
                tag24(r, tmp, tmp+1); tag24(r+4, tmp+2, tmp+3)
                a(f"v_cmp_ne_u32 vcc, s30, v{tmp}\nv_cmp_ne_u32 s[52:53], s30, v{tmp+2}")
                for k in range(8): a(f"v_and_b32 v{16+k}, v15, v{r+k}")
            else:
                a(f"v_cmp_ne_u32 vcc, s30, v{r+3}\nv_cmp_ne_u32 s[52:53], s30, v{r+7}")
                for k in (0, 2, 4, 6): a(f"v_mov_b64 v[{16+k}:{17+k}], v[{r+k}:{r+k+1}]")
            a(f"s_or_b64 exec, vcc, s[52:53]\ns_cbranch_execz L_{name}done")
            issue(r)
        if FBK and fast:
            a(f"s_cmp_eq_u32 s38, {spin-NF}\ns_cselect_b32 s39, {FBK}, 0\ns_add_u32 s50, s50, s39\ns_addc_u32 s51, s51, 0")
        a(f"s_sub_u32 s38, s38, 1\ns_cbranch_scc0 L_{name}poll\nL_{name}done:\ns_mov_b64 exec, -1")
    def poll(name, off2, s0, s1, t24, fb=False, pre=None):
        FBK = fb
        if s0: a(f"s_sleep {s0}")
        a(f"""
s_mov_b32 s38, {spin}
""")
        LD = f"global_load_dwordx4 v[16:19], v10, s[50:51] sc1\nglobal_load_dwordx4 v[20:23], v10, s[50:51] offset:{off2} sc1"
        if pre:
            a(LD); pre(); a(f"s_branch L_{name}chk")
        a(f"L_{name}poll:\n{LD}\nL_{name}chk:\ns_waitcnt vmcnt(0)")
        if t24:
            tag24(16, 24, 25); tag24(20, 26, 27)
            a("v_cmp_ne_u32 vcc, s30, v24\nv_cmp_ne_u32 s[52:53], s30, v26")
        else:
            a("v_cmp_ne_u32 vcc, s30, v19\nv_cmp_ne_u32 s[52:53], s30, v23")
        a(f"""
s_or_b64 exec, vcc, s[52:53]
s_cbranch_execz L_{name}done
{"s_sleep %d" % s1 if s1 else ""}
{f"s_cmp_eq_u32 s38, {spin-NF}; s_cselect_b32 s39, {FBK}, 0; s_add_u32 s50, s50, s39; s_addc_u32 s51, s51, 0".replace("; ", chr(10)) if fb and fast else ""}
s_sub_u32 s38, s38, 1
s_cbranch_scc0 L_{name}poll
L_{name}done:
s_mov_b64 exec, -1
""")

    def ldsspin(nm, off=4, ar=12, thr=4):
        a(f"""
s_mov_b32 s39, {spin}
L_spin{nm}:
{f"s_sleep {spz}" if spz and nm in "FC" else ""}
ds_read_b32 v13, v{ar} offset:{off}
s_sub_u32 s39, s39, 1
s_cbranch_scc1 L_spind{nm}
s_waitcnt lgkmcnt(0)
v_readfirstlane_b32 s38, v13
s_cmp_lt_u32 s38, {thr}
s_cbranch_scc1 L_spin{nm}
L_spind{nm}:
""")
    def pubbases(mid=""):
        a(f"""
s_lshl_b32 s54, s32, 5
s_add_u32 s54, s54, s33
s_lshl_b32 s54, s54, 11
s_add_u32 s54, s54, {OG}
s_and_b32 s56, s33, 3
s_lshl_b32 s56, s56, 3
s_add_u32 s56, s56, s32
s_lshl_b32 s56, s56, 3
s_lshr_b32 s39, s33, 2
s_add_u32 s56, s56, s39
s_lshl_b32 s56, s56, 11
s_add_u32 s56, s56, {FG}
{mid}
s_add_u32 s54, s28, s54
s_addc_u32 s55, s29, 0
s_add_u32 s56, s28, s56
s_addc_u32 s57, s29, 0
""")
    a("""
""")
    stamp(0)
    a(f"""
s_cmp_ge_u32 s2, 256
s_cbranch_scc1 L_end
s_load_dwordx16 s[4:19], s[0:1], 0
s_load_dwordx8 s[20:27], s[0:1], 64
s_load_dwordx2 s[28:29], s[0:1], 96
v_lshrrev_b32 v1, 6, v0
v_and_b32 v2, 0xff, v0
v_and_b32 v0, 63, v0
v_readfirstlane_b32 s36, v1
s_and_b32 s32, s2, 7
s_lshr_b32 s33, s2, 3
s_lshr_b32 s34, s2, 6
s_and_b32 s35, s33, 7
v_lshlrev_b32 v2, 4, v2
v_and_b32 v1, 15, v0
v_lshrrev_b32 v6, 4, v0
s_mov_b32 s40, 0x05040100
s_mov_b32 s41, 0x07060302
s_and_b32 s37, s36, 3
s_lshl_b32 s47, s32, 5
s_add_u32 s47, s47, s33
s_lshl_b32 s47, s47, 4
s_cmp_lt_u32 s36, 4
s_cbranch_scc1 L_B
s_cmp_ge_u32 s36, 8
s_cbranch_scc1 L_C0
""")
    KR, VR, WR, FR, QR, SR, PR = 16, 48, 80, 96, 128, 144, 152
    loads = []
    for t in range(2):
        for s in range(4):
            r = KR + (t*4+s)*4
            loads.append(f"global_load_dwordx4 v[{r}:{r+3}], v3, s[6:7] offset:{t*4096-4096+s*64}{NT}" if not il else f"global_load_dwordx4 v[{r}:{r+3}], v{8 if kx and s >= 2 else 3}, s[{6+64*t}:{7+64*t}] offset:{(s*64) % (128 if kx else 256)}{NK}")
    for t in range(2):
        for s in range(4):
            r = VR + (t*4+s)*4
            loads.append(f"global_load_dwordx4 v[{r}:{r+3}], v4, s[8:9] offset:{t*4096-4096+s*256}{NT}" if not il else f"global_load_dwordx4 v[{r}:{r+3}], v{15 if vc else 4}, s[{8+64*t}:{9+64*t}] offset:{s*(1024 if vc else 256)}{NT}")
    for i in range(4):
        loads.append(f"global_load_dwordx4 v[{WR+4*i}:{WR+3+4*i}], v5, s[12:13]{NO}" + ("\nv_add_u32 v5, 0x2000, v5" if i < 3 else ""))
    WOB = """s_lshr_b32 s46, s33, 2
s_lshl_b32 s38, s32, 19
s_and_b32 s39, s46, 1
s_lshl_b32 s39, s39, 18
s_add_u32 s38, s38, s39
s_and_b32 s39, s37, 1
s_lshl_b32 s39, s39, 17
s_add_u32 s38, s38, s39
s_lshr_b32 s39, s46, 1
s_lshl_b32 s39, s39, 15
s_add_u32 s38, s38, s39
s_lshr_b32 s39, s37, 1
s_lshl_b32 s39, s39, 12
s_add_u32 s38, s38, s39
s_and_b32 s39, s33, 3
s_lshl_b32 s39, s39, 8
s_add_u32 s38, s38, s39
v_lshlrev_b32 v4, 4, v1
v_lshl_add_u32 v4, v6, 10, v4
v_add_u32 v5, s38, v4
"""
    SH = 0
    if tlb >= 1: loads = [loads[0], loads[15]] + loads[1:15] + loads[16:]; SH = 1
    if tlb >= 2: loads = loads[:2] + [loads[16]] + loads[2:16] + loads[17:]; SH = 2
    NV = 16 + (1 if tlb >= 2 else 0)
    NL = NV if wod else 20
    st = dict(issued=0, done=0)
    def issue_upto(n, lim=None):
        while st["issued"] < min(n, lim or NL):
            a(loads[st["issued"]]); st["issued"] += 1
    def wait_done(n):
        if n > st["done"]:
            a(f"s_waitcnt vmcnt({st['issued']-n})"); st["done"] = n
    a(f"""
s_lshl_b32 s44, s34, 3
s_add_u32 s44, s44, s32
s_lshl_b32 s44, s44, 20
s_lshl_b32 s45, s35, {[15, 15, 14][il]}
s_add_u32 s44, s44, s45
s_lshl_b32 s45, s37, {[13, 12, 12][il]}
s_add_u32 s44, s44, s45
s_add_u32 s44, s44, {0xC0000 if il else 0xC1000}
{"v_and_b32 v3, 3, v1; v_lshlrev_b32 v3, 10, v3; v_lshrrev_b32 v8, 2, v1; v_lshl_add_u32 v3, v8, 8, v3; v_lshlrev_b32 v15, 4, v0".replace("; ", chr(10)) if vc else "v_lshlrev_b32 v3, 8, v1"}
v_lshl_add_u32 v3, v6, 4, v3
{"s_and_b32 s45, s37, 1; s_lshl_b32 s45, s45, 7; v_add_u32 v3, s45, v3; v_xor_b32 v8, 0x80, v3".replace("; ", chr(10)) if kx else ""}
{f"s_bfe_u32 s45, {'s36' if hp > 8 else 's2'}, {0x10000 + (hp % 8)}; s_lshl_b32 s45, s45, 17; s_add_u32 s44, s44, s45; s_xor_b32 s45, s44, 0x20000".replace("; ", chr(10)) if hp else f"s_add_u32 s45, s44, {[0, 0x4000, 0x20000][il]}"}
{WOB}
s_waitcnt lgkmcnt(0)
s_load_dword s30, s[28:29], 0
s_add_u32 s70, s6, s45
s_addc_u32 s71, s7, 0
s_add_u32 s6, s6, s44
s_addc_u32 s7, s7, 0
s_add_u32 s72, s8, s45
s_addc_u32 s73, s9, 0
s_add_u32 s8, s8, s44
s_addc_u32 s9, s9, 0
""")
    if xb: a("s_barrier")
    if not early: a("s_barrier")
    issue_upto(W0)
    if tt:
        a("s_cmp_lg_u32 s36, 7\ns_cbranch_scc1 L_nott\ns_mov_b64 exec, 1")
        a("global_load_dword v159, v4, s[8:9] nt")
        if tt >= 2: a("global_load_dword v159, v5, s[12:13] nt")
        a("s_mov_b64 exec, -1\nL_nott:")
    if early: a("s_barrier")
    a(f"""s_branch L_A
L_C0:
{"s_getpc_b64 s[60:61]; s_and_b32 s60, s60, 0xffffff00; v_lshlrev_b32 v16, 3, v2; v_mov_b32 v17, s61; v_min_u32 v16, CODELEN, v16; v_add_co_u32 v16, vcc, s60, v16; v_addc_co_u32 v17, vcc, 0, v17, vcc; s_cmp_ge_u32 s36, 10; s_cbranch_scc1 L_nopf; global_load_dword v18, v[16:17], off; L_nopf:".replace("; ", chr(10)) if pf else ""}
v_mov_b32 v12, {CNT}
v_mov_b32 v14, 0
v_mov_b32 v15, 0
ds_write_b64 v12, v[14:15]
ds_write_b64 v12, v[14:15] offset:8
v_cmp_gt_u32 vcc, 0xE00, v2
{chr(10).join(f"v_mov_b32 v{r}, 0" for r in range(80, 96))}
""")
    pubbases("""s_mov_b64 exec, vcc
s_waitcnt lgkmcnt(0)
""" + ("s_barrier" if xb or cl == 1 else "") + """
global_load_dwordx4 v[80:83], v2, s[16:17]
global_load_dwordx4 v[84:87], v2, s[18:19]
global_load_dwordx4 v[88:91], v2, s[20:21]
s_mov_b64 exec, -1""")
    if cl == 2: a("s_barrier\ns_sleep 4")
    if prewarm: a(f"""s_cmp_ge_u32 s36, 10
s_cbranch_scc1 L_nowarm
global_store_dwordx4 v2, v[92:95], s[54:55]{FS}
global_store_dwordx4 v2, v[92:95], s[56:57] sc1
L_nowarm:""")
    a(f"""
{"" if cl else "s_barrier"}
s_branch L_C
L_B:
""")
    if bp: a(f"s_setprio {bp}")
    a(f"""
v_lshrrev_b32 v7, 3, v1
v_lshlrev_b32 v7, 4, v7
v_lshl_add_u32 v7, v6, 2, v7
v_and_b32 v8, 7, v1
v_lshlrev_b32 v8, 4, v8
v_lshl_add_u32 v4, v7, 13, v8
s_lshl_b32 s38, s34, 20
s_lshl_b32 s39, s32, 10
s_add_u32 s38, s38, s39
s_lshl_b32 s39, s35, 7
s_add_u32 s38, s38, s39
s_lshl_b32 s39, s36, 18
s_add_u32 s38, s38, s39
v_add_u32 v4, s38, v4
s_waitcnt lgkmcnt(0)
global_load_dwordx4 v[16:19], v2, s[4:5]
s_load_dword s30, s[28:29], 0
s_load_dword s31, s[22:23], 0
""")
    if xb: a("s_barrier")
    for i in range(4):
        a(f"global_load_dwordx4 v[{64+4*i}:{67+4*i}], v4, s[10:11]{NQ}" + ("\nv_add_u32 v4, 0x2000, v4" if i < 3 else ""))
    a(f"""
s_barrier
v_mov_b32 v12, {CNT}
s_mov_b32 s44, {f2u(1.0/512):#x}
s_mov_b32 s45, {f2u(1e-5):#x}
s_mov_b32 s42, 0x0c0c0400
s_mov_b32 s43, 0x04000c0c
s_mul_i32 s38, s36, {XS}
v_lshlrev_b32 v7, 4, v0
v_add_u32 v7, s38, v7
v_and_b32 v9, 3, v1
v_mul_u32_u24 v10, {XS}, v9
v_bfe_u32 v11, v1, 2, 1
v_lshl_add_u32 v10, v11, 5, v10
v_lshl_add_u32 v10, v6, 3, v10
s_lshl_b32 s38, s34, 8
s_lshl_b32 s39, s36, 6
s_add_u32 s38, s38, s39
v_add_u32 v10, s38, v10
v_mul_u32_u24 v11, 20, v6
v_add_lshl_u32 v11, v11, v1, 4
s_mul_i32 s38, s36, {QPW}
v_add_u32 v11, s38, v11
v_mov_b32 v50, 0
v_mov_b32 v51, 0
v_mov_b32 v52, 0
v_mov_b32 v53, 0
s_lshl_b32 s38, s32, 15
s_lshl_b32 s39, s33, 8
s_add_u32 s38, s38, s39
s_add_u32 s38, s38, {QG}
s_add_u32 s50, s28, s38
s_addc_u32 s51, s29, 0
v_lshlrev_b32 v54, 4, v1
v_lshl_add_u32 v54, v6, 13, v54
s_waitcnt vmcnt(4)
""")
    stamp(1)
    for p in range(4): a(f"v_lshlrev_b32 v{32+2*p}, 16, v{16+p}\nv_and_b32 v{33+2*p}, 0xffff0000, v{16+p}")
    a("""
v_pk_add_f32 v[40:41], v[32:33], v[34:35]
v_pk_add_f32 v[42:43], v[36:37], v[38:39]
v_pk_add_f32 v[40:41], v[40:41], v[42:43]
v_add_f32 v40, v40, v41
""")
    allreduce(40, 41)
    a("v_mul_f32 v40, s44, v40")
    for p in range(4): a(f"v_pk_add_f32 v[{42+2*p}:{43+2*p}], v[{32+2*p}:{33+2*p}], v[40:41] op_sel_hi:[1,0] neg_lo:[0,1] neg_hi:[0,1]")
    a("""
v_pk_mul_f32 v[42:43], v[42:43], v[42:43]
v_pk_fma_f32 v[42:43], v[44:45], v[44:45], v[42:43]
v_pk_fma_f32 v[42:43], v[46:47], v[46:47], v[42:43]
v_pk_fma_f32 v[42:43], v[48:49], v[48:49], v[42:43]
v_add_f32 v42, v42, v43
""")
    bfround(40, 40)
    a("s_nop 0")
    fill = []
    for p in range(4): fill.append(f"v_pk_add_f32 v[{32+2*p}:{33+2*p}], v[{32+2*p}:{33+2*p}], v[40:41] op_sel_hi:[1,0] neg_lo:[0,1] neg_hi:[0,1]")
    for p in range(8): fill.append(f"v_cvt_pk_bf16_f32 v{32+p}, 0, v{32+p}")
    fill += ["s_nop 0", "", "s_nop 0", ""]
    a(dpp("add", 42, 8))
    for r in (4, 2, 1): a(fill.pop(0) + "\n" + fill.pop(0) + "\n" + dpp("add", 42, r))
    for sw in (16, 32):
        a(f"v_mov_b32 v43, v42\n{fill.pop(0)}\n{fill.pop(0)}\nv_permlane{sw}_swap_b32 v42, v43\n{fill.pop(0)}\nv_add_f32 v42, v42, v43")
    a("v_mul_f32 v42, s44, v42")
    bfround(42, 42)
    a("v_add_f32 v42, s45, v42")
    bfround(42, 42)
    a("v_sqrt_f32 v42, v42\n" + fill.pop(0) + "\n" + fill.pop(0))
    bfround(42, 42)
    a("v_rcp_f32 v42, v42\n" + fill.pop(0) + "\n" + fill.pop(0))
    assert not fill
    for p in range(4): a(f"v_pk_mul_f32 v[{32+2*p}:{33+2*p}], v[{32+2*p}:{33+2*p}], v[42:43] op_sel_hi:[1,0]")
    for p in range(4): a(f"v_cvt_pk_bf16_f32 v{16+p}, v{32+2*p}, v{33+2*p}")
    a(f"ds_write_b128 v7, v[16:19] offset:{XN}\nv_mov_b32 v13, 1\ns_mov_b64 exec, 1\ns_waitcnt lgkmcnt(0)\nds_add_u32 v12, v13 offset:4\ns_mov_b64 exec, -1")
    a("s_mul_i32 s30, s30, 0x9E3779B1\ns_add_u32 s30, s30, 0x7F4A7C15\ns_or_b32 s30, s30, 1")
    if qwarm:
        a("s_cmp_lg_u32 s36, 0\ns_cbranch_scc1 L_noqw\ns_not_b32 s38, s30\nv_mov_b32 v40, s38\nv_mov_b32 v41, s38\nv_mov_b32 v42, s38\nv_mov_b32 v43, s38\nglobal_store_dwordx4 v54, v[40:43], s[50:51]" + FS + "\nL_noqw:")
    stamp(2)
    ldsspin("B")
    a(f"""
s_mov_b32 exec_lo, 0x00ff00ff
s_mov_b32 exec_hi, 0x00ff00ff
ds_read_b64 v[50:51], v10 offset:{XN}
s_not_b64 exec, exec
ds_read_b64 v[52:53], v10 offset:{XN}
s_mov_b64 exec, -1
s_waitcnt vmcnt(0)
""")
    stamp(3)
    for t in range(8):
        j = t // 2; sel = "s40" if t % 2 == 0 else "s41"
        a(f"v_perm_b32 v{80+2*t}, v{68+j}, v{64+j}, {sel}\nv_perm_b32 v{81+2*t}, v{76+j}, v{72+j}, {sel}")
    a("s_waitcnt lgkmcnt(0)")
    for j in range(4):
        a(f"v_mfma_f32_16x16x32_bf16 v[{96+4*j}:{99+4*j}], v[{80+4*j}:{83+4*j}], v[50:53], 0")
    a(f"""
v_bfe_u32 v14, v1, 1, 2
v_mul_u32_u24 v14, 81, v14
v_lshrrev_b32 v15, 3, v1
v_mul_u32_u24 v15, 20, v15
v_add3_u32 v14, v14, v15, v6
v_and_b32 v15, 1, v1
v_lshl_add_u32 v14, v15, 3, v14
v_lshlrev_b32 v14, 4, v14
""")
    for j in range(4):
        a(f"ds_write_b128 v11, v[{96+4*j}:{99+4*j}] offset:{QP+81*16*j}")
    a(f"""
v_mov_b32 v13, 1
s_mov_b64 exec, 1
s_waitcnt lgkmcnt(0)
ds_add_rtn_u32 v13, v12, v13
s_mov_b64 exec, -1
s_waitcnt lgkmcnt(0)
v_readfirstlane_b32 s38, v13
s_cmp_lg_u32 s38, 3
s_cbranch_scc1 L_noqpub
""")
    for s in range(8):
        a(f"ds_read_b128 v[{64+4*s}:{67+4*s}], v14 offset:{QP+QPW*(s//2)+(s%2)*44*16}")
    for s in range(4):
        a(f"s_waitcnt lgkmcnt({6-2*s})")
        a(f"v_pk_add_f32 v[{64+8*s}:{65+8*s}], v[{64+8*s}:{65+8*s}], v[{68+8*s}:{69+8*s}]\nv_pk_add_f32 v[{66+8*s}:{67+8*s}], v[{66+8*s}:{67+8*s}], v[{70+8*s}:{71+8*s}]")
    for (x, y) in ((64, 72), (80, 88), (64, 80)):
        a(f"v_pk_add_f32 v[{x}:{x+1}], v[{x}:{x+1}], v[{y}:{y+1}]\nv_pk_add_f32 v[{x+2}:{x+3}], v[{x+2}:{x+3}], v[{y+2}:{y+3}]")
    pack24(64)
    a("global_store_dwordx4 v54, v[64:67], s[50:51]" + FS)
    if fast: a(f"v_add_u32 v54, {FBQ}, v54\nglobal_store_dwordx4 v54, v[64:67], s[50:51] sc1")
    if fl: a("v_mov_b32 v13, 1\ns_mov_b64 exec, 1\nds_add_u32 v12, v13\ns_mov_b64 exec, -1")
    a("L_noqpub:")
    stamp(4)
    pubbases()
    a(f"""
v_lshrrev_b32 v10, 5, v0
v_lshlrev_b32 v10, 12, v10
v_and_b32 v11, 31, v0
v_lshl_add_u32 v10, v11, 4, v10
s_lshl_b32 s38, s32, 2
s_add_u32 s38, s38, s34
s_lshl_b32 s38, s38, 13
s_lshl_b32 s39, s36, 9
s_add_u32 s38, s38, s39
s_add_u32 s38, s38, {QG}
s_add_u32 s50, s28, s38
s_addc_u32 s51, s29, 0
v_bfe_u32 v11, v0, 3, 2
v_lshlrev_b32 v11, 6, v11
v_lshrrev_b32 v12, 5, v0
v_lshl_add_u32 v11, v12, 5, v11
v_and_b32 v12, 7, v0
v_lshl_add_u32 v11, v12, 1, v11
s_mul_i32 s38, s36, {QS}
v_add_u32 v11, s38, v11
v_mov_b32 v15, 0xffffff00
""")
    def qpost(R):
        for r in range(8): a(f"v_and_b32 v{16+r}, v15, v{R+r}")
    if qn:
        ppoll("q", 2048, qs0, qd, True, FBQ, [64, 72, 80, 88][:qn], 44, qpost)
    else:
        poll("q", 2048, qs0, qs, True, FBQ, (lambda: a(f"v_mov_b32 v12, {CNT}\nv_mov_b32 v13, 1\ns_mov_b64 exec, 1\nds_add_u32 v12, v13 offset:12\ns_mov_b64 exec, -1")) if f2 else None); qpost(16)
    a(f"""
v_pk_add_f32 v[16:17], v[16:17], v[20:21]
v_pk_add_f32 v[18:19], v[18:19], v[22:23]
s_nop 1
v_permlane32_swap_b32 v16, v18
v_permlane32_swap_b32 v17, v19
s_nop 0
v_pk_add_f32 v[16:17], v[16:17], v[18:19]
v_cvt_pk_bf16_f32 v16, v16, v17
ds_write_b16 v11, v16 offset:{QQ}
ds_write_b16_d16_hi v11, v16 offset:{QQ+16}
v_lshrrev_b32 v4, 2, v1
v_lshlrev_b32 v4, 5, v4
v_mov_b32 v12, {CNT}
v_mov_b32 v13, 1
v_mov_b32 v43, s30
""")
    if qb: a("s_waitcnt lgkmcnt(0)")
    else: a("s_mov_b64 exec, 1\ns_waitcnt lgkmcnt(0)\nds_add_u32 v12, v13 offset:8\ns_mov_b64 exec, -1")
    stamp(5)
    if mp != 3: a(f"s_setprio {mp}")
    if qb: a("s_barrier")
    a("s_cmp_eq_u32 s36, 2\ns_cbranch_scc1 L_final")
    a("s_cmp_eq_u32 s36, 3\ns_cbranch_scc1 L_B3")
    if ms: a(f"s_sleep {ms}")
    if bpre: ldsspin("M", 12, 12)
    if prio: a("s_setprio 3")
    if bpre:
        a(f"""
ds_read_b128 v[8:11], v4 offset:{ML}
ds_read_b128 v[12:15], v4 offset:{ML+16}
s_waitcnt lgkmcnt(0)
v_max3_f32 v42, v8, v10, v12
v_max_f32 v42, v42, v14
v_sub_f32 v8, v8, v42
v_sub_f32 v10, v10, v42
v_sub_f32 v12, v12, v42
v_sub_f32 v14, v14, v42
v_exp_f32 v8, v8
v_exp_f32 v10, v10
v_exp_f32 v12, v12
v_exp_f32 v14, v14
v_mul_f32 v9, v8, v9
v_fmac_f32 v9, v10, v11
v_fmac_f32 v9, v12, v13
v_fmac_f32 v9, v14, v15
v_rcp_f32 v34, v9
v_log_f32 v35, v9
v_mul_f32 v8, v8, v34
v_mul_f32 v10, v10, v34
v_mul_f32 v12, v12, v34
v_mul_f32 v14, v14, v34
v_add_f32 v42, v42, v35
s_barrier
""")
        for w in range(4): a(f"ds_read_b128 v[{16+4*w}:{19+4*w}], v2 offset:{OP+2048*w}")
        stamp(6)
        a("""
s_waitcnt lgkmcnt(3)
v_pk_mul_f32 v[16:17], v[16:17], v[8:9] op_sel_hi:[1,0]
v_pk_mul_f32 v[18:19], v[18:19], v[8:9] op_sel_hi:[1,0]
s_waitcnt lgkmcnt(2)
v_pk_fma_f32 v[16:17], v[20:21], v[10:11], v[16:17] op_sel_hi:[1,0,1]
v_pk_fma_f32 v[18:19], v[22:23], v[10:11], v[18:19] op_sel_hi:[1,0,1]
s_waitcnt lgkmcnt(1)
v_pk_fma_f32 v[16:17], v[24:25], v[12:13], v[16:17] op_sel_hi:[1,0,1]
v_pk_fma_f32 v[18:19], v[26:27], v[12:13], v[18:19] op_sel_hi:[1,0,1]
s_waitcnt lgkmcnt(0)
v_pk_fma_f32 v[16:17], v[28:29], v[14:15], v[16:17] op_sel_hi:[1,0,1]
v_pk_fma_f32 v[18:19], v[30:31], v[14:15], v[18:19] op_sel_hi:[1,0,1]
v_cvt_pk_bf16_f32 v40, v16, v17
v_cvt_pk_bf16_f32 v41, v18, v19
""")
    else:
      a(f"""
s_barrier
ds_read_b128 v[8:11], v4 offset:{ML}
ds_read_b128 v[12:15], v4 offset:{ML+16}
""")
      for w in range(4): a(f"ds_read_b128 v[{16+4*w}:{19+4*w}], v2 offset:{OP+2048*w}")
      stamp(6)
      a("""
s_waitcnt lgkmcnt(4)
v_max3_f32 v42, v8, v10, v12
v_max_f32 v42, v42, v14
v_sub_f32 v8, v8, v42
v_sub_f32 v10, v10, v42
v_exp_f32 v8, v8
v_sub_f32 v12, v12, v42
v_exp_f32 v10, v10
v_sub_f32 v14, v14, v42
v_exp_f32 v12, v12
v_mul_f32 v9, v8, v9
v_exp_f32 v14, v14
v_fmac_f32 v9, v10, v11
s_waitcnt lgkmcnt(2)
v_pk_mul_f32 v[16:17], v[16:17], v[8:9] op_sel_hi:[1,0]
v_fmac_f32 v9, v12, v13
v_pk_mul_f32 v[18:19], v[18:19], v[8:9] op_sel_hi:[1,0]
v_fmac_f32 v9, v14, v15
v_pk_fma_f32 v[16:17], v[20:21], v[10:11], v[16:17] op_sel_hi:[1,0,1]
v_rcp_f32 v34, v9
v_pk_fma_f32 v[18:19], v[22:23], v[10:11], v[18:19] op_sel_hi:[1,0,1]
v_log_f32 v35, v9
s_waitcnt lgkmcnt(0)
v_pk_fma_f32 v[16:17], v[24:25], v[12:13], v[16:17] op_sel_hi:[1,0,1]
v_pk_fma_f32 v[18:19], v[26:27], v[12:13], v[18:19] op_sel_hi:[1,0,1]
v_pk_fma_f32 v[16:17], v[28:29], v[14:15], v[16:17] op_sel_hi:[1,0,1]
v_pk_fma_f32 v[18:19], v[30:31], v[14:15], v[18:19] op_sel_hi:[1,0,1]
v_pk_mul_f32 v[16:17], v[16:17], v[34:35] op_sel_hi:[1,0]
v_pk_mul_f32 v[18:19], v[18:19], v[34:35] op_sel_hi:[1,0]
v_add_f32 v42, v42, v35
v_cvt_pk_bf16_f32 v40, v16, v17
v_cvt_pk_bf16_f32 v41, v18, v19
""")
    a("global_store_dwordx4 v2, v[40:43], s[54:55]" + FS)
    if ofd: a(f"s_sleep {ofd}")
    if fast: a(f"s_add_u32 s54, s54, {FBO}\ns_addc_u32 s55, s55, 0\nglobal_store_dwordx4 v2, v[40:43], s[54:55] sc1")
    stamp(7)
    a("s_barrier")
    for w in range(4): a(f"ds_read_b128 v[{16+4*w}:{19+4*w}], v2 offset:{WP+2048*w}")
    stamp(8)
    a("""
s_waitcnt lgkmcnt(2)
v_pk_add_f32 v[16:17], v[16:17], v[20:21]
v_pk_add_f32 v[18:19], v[18:19], v[22:23]
s_waitcnt lgkmcnt(0)
v_pk_add_f32 v[24:25], v[24:25], v[28:29]
v_pk_add_f32 v[26:27], v[26:27], v[30:31]
v_pk_add_f32 v[16:17], v[16:17], v[24:25]
v_pk_add_f32 v[18:19], v[18:19], v[26:27]
""")
    pack24(16)
    a("global_store_dwordx4 v2, v[16:19], s[56:57] sc1")
    if cln: a(f"s_sleep {cln}\ns_sub_u32 s54, s54, {FBO}\ns_subb_u32 s55, s55, 0\nglobal_store_dwordx4 v2, v[40:43], s[54:55] sc1")
    stamp(9)
    if stamps:
        a("L_flushB:")
        flush_stamps(range(0, 12))
    a("s_endpgm")
    a("L_B3:\ns_barrier\ns_barrier\n" + ("s_branch L_flushB" if stamps else "s_endpgm"))
    a(f"""L_final:
v_and_b32 v8, 1, v0
v_lshl_add_u32 v8, v6, 1, v8
v_lshl_add_u32 v3, v8, 1, s47
global_load_ushort v5, v3, s[4:5]
v_lshlrev_b32 v8, 4, v8
s_bfe_u32 s38, s47, 0x20008
s_lshl_b32 s38, s38, 17
s_lshr_b32 s39, s32, 1
s_lshl_b32 s39, s39, 8
s_add_u32 s38, s38, s39
s_and_b32 s39, s47, 0xf0
s_add_u32 s38, s38, s39
s_add_u32 s38, s38, {FG}
s_add_u32 s50, s28, s38
s_addc_u32 s51, s29, 0
v_lshlrev_b32 v10, 11, v0
s_lshl_b32 s31, s31, 16
s_barrier
ds_read_b128 v[32:35], v8 offset:{GG}
s_waitcnt lgkmcnt(0)
v_add_f32 v32, v32, v33
v_add_f32 v34, v34, v35
v_add_f32 v32, v32, v34
""")
    bfround(32, 32)
    a("v_add_f32 v32, s31, v32")
    bfround(32, 32)
    a(f"""
v_mul_f32 v33, {f2u(-LOG2E):#x}, v32
v_exp_f32 v33, v33
s_nop 0
v_add_f32 v33, 1.0, v33
v_rcp_f32 v33, v33
s_nop 0
v_mul_f32 v32, v32, v33
""")
    bfround(32, 32)
    a("s_waitcnt vmcnt(0)\nv_lshlrev_b32 v4, 16, v5\ns_nop 1\nv_mov_b32_dpp v33, v32 quad_perm:[1,0,3,2] row_mask:0xf bank_mask:0xf\nv_mov_b32_dpp v5, v4 quad_perm:[1,0,3,2] row_mask:0xf bank_mask:0xf\ns_barrier")
    if fm:
        mpoll("f", 1024, fs0, fd, True, 0, [96, 104, 112][:fm], 44)
    elif fn:
        ppoll("f", 1024, fs0, fd, True, 0, [96, 104, 112, 120][:fn], 44, qpost)
    else:
        poll("f", 1024, fs0, fs, True); qpost(16)
    stamp(10)
    reduce8(16, 20, False)
    a("""
v_cvt_pk_bf16_f32 v16, 0, v16
v_cvt_pk_bf16_f32 v17, 0, v17
s_mov_b32 exec_lo, 0x00010001
v_pk_mul_f32 v[16:17], v[16:17], v[32:33]
s_mov_b32 exec_hi, 0x00010001
v_cvt_pk_bf16_f32 v16, 0, v16
v_cvt_pk_bf16_f32 v17, 0, v17
v_pk_add_f32 v[16:17], v[16:17], v[4:5]
v_cvt_pk_bf16_f32 v16, v16, v17
global_store_dword v3, v16, s[24:25]
s_cmp_lg_u32 s2, 0
s_cbranch_scc1 L_noep
s_mov_b64 exec, 1
v_mov_b32 v0, 0
v_mov_b32 v1, s30
global_store_dword v0, v1, s[28:29]
L_noep:
""")
    if stamps:
        a("s_waitcnt vmcnt(0)")
        stamp(11)
        a("s_branch L_flushB")
    a("s_endpgm")

    a("L_A:")
    if ap: a(f"s_setprio {ap}")
    stamp(1)
    a(f"""
v_lshrrev_b32 v9, 2, v1
v_mul_u32_u24 v7, {QS}, v9
v_lshl_add_u32 v7, v6, 4, v7
{"s_and_b32 s38, s37, 1; s_lshl_b32 s38, s38, 7; s_xor_b32 s39, s38, 0x80; v_add_u32 v2, s39, v7; v_add_u32 v7, s38, v7".replace("; ", chr(10)) if kx else ""}
s_lshl_b32 s38, s37, 11
v_lshlrev_b32 v11, 4, v0
v_add_u32 v11, s38, v11
s_lshl_b32 s38, s37, 3
v_lshlrev_b32 v12, 5, v9
v_add_u32 v12, s38, v12
v_and_b32 v13, 3, v1
v_lshlrev_b32 v10, 12, v13
v_lshl_add_u32 v10, v9, 14, v10
v_lshl_add_u32 v10, v6, 4, v10
s_lshl_b32 s66, s32, 16
s_lshl_b32 s67, s46, 7
s_add_u32 s66, s66, s67
s_lshr_b32 s67, s37, 1
s_lshl_b32 s67, s67, 10
s_add_u32 s66, s66, s67
s_and_b32 s67, s37, 1
s_lshl_b32 s67, s67, 6
s_add_u32 s66, s66, s67
s_add_u32 s66, s66, {OG}
s_add_u32 s50, s28, s66
s_addc_u32 s51, s29, 0
s_mov_b32 s58, 0x11111111
s_mov_b32 s59, 0x11111111
s_mov_b32 s60, 0x22222222
s_mov_b32 s61, 0x22222222
s_mov_b32 s62, 0x44444444
s_mov_b32 s63, 0x44444444
s_mov_b32 s64, 0x88888888
s_mov_b32 s65, 0x88888888
s_mov_b32 s68, {f2u(SCALE):#x}
s_mov_b32 s69, {f2u(LOG2E):#x}
""")
    d = 1
    if fl:
        a(f"v_mov_b32 v14, {CNT}\ns_sleep {fsl}")
        if fl[0] > W0: ldsspin("F", 0, 14, f1)
        stamp(2); issue_upto(fl[0])
        if f2: ldsspin("G", 12, 14, 4); issue_upto(f2)
        stamp(3)
        for (dn, up) in fl[1:]: wait_done(dn); issue_upto(up)
        assert st["issued"] == NL
    elif rate:
        stamp(2); stamp(3)
        k0, k = rate
        a(f"s_sleep {k0}")
        while st["issued"] < NL:
            wait_done(st["issued"] + 1 - W); issue_upto(st["issued"] + 1)
            if st["issued"] < NL: a(f"s_sleep {k}")
    else:
        wait_done(1); stamp(2)
    if sched:
        stamp(3)
        for (dn, up) in sched: wait_done(dn); issue_upto(up)
        assert st["issued"] == NL
    issue_upto(W + 1)
    while st["issued"] < NL:
        d += step
        wait_done(d); issue_upto(W + d)
        if d - step < 8 + SH <= d: stamp(3)
    stamp(4)
    a("s_waitcnt lgkmcnt(0)\ns_mul_i32 s30, s30, 0x9E3779B1\ns_add_u32 s30, s30, 0x7F4A7C15\ns_or_b32 s30, s30, 1")
    wait_done(12 + SH)
    for t in range(8):
        j = t // 2; sel = "s40" if t % 2 == 0 else "s41"
        a(f"v_perm_b32 v{FR+4*t}, v{VR+4+j}, v{VR+j}, {sel}\nv_perm_b32 v{FR+1+4*t}, v{VR+12+j}, v{VR+8+j}, {sel}")
    if vp2:
        wait_done(NV)
        if wod == 6: issue_upto(20, 20)
        for t in range(8):
            j = t // 2; sel = "s40" if t % 2 == 0 else "s41"
            a(f"v_perm_b32 v{FR+2+4*t}, v{VR+20+j}, v{VR+16+j}, {sel}\nv_perm_b32 v{FR+3+4*t}, v{VR+28+j}, v{VR+24+j}, {sel}")
    a(f"v_mov_b32 v14, {CNT}\nv_mov_b32 v13, 1")
    if prio: a("s_setprio 2")
    if qb: a("s_barrier")
    else: ldsspin("A", 8, 14); a("v_mov_b32 v13, 1")
    for s in range(4):
        a(f"ds_read_b128 v[{QR+4*s}:{QR+3+4*s}], v7 offset:{QQ+64*s}")
    stamp(6)
    if wod == 1: issue_upto(20, 20)
    for s in range(4):
        a(f"s_waitcnt lgkmcnt({3-s})")
        for t in range(2):
            r = KR + (t*4+s)*4
            c = "0" if s == 0 else f"v[{SR+4*t}:{SR+3+4*t}]"
            a(f"v_mfma_f32_16x16x32_bf16 v[{SR+4*t}:{SR+3+4*t}], v[{r}:{r+3}], v[{QR+4*s}:{QR+3+4*s}], {c}")
    M, L, T = 156, 157, 158
    def rnd(p): return f"v_cvt_pk_bf16_f32 v{SR+p}, 0, v{SR+p}"
    def scl(p): return f"v_pk_mul_f32 v[{SR+2*p}:{SR+1+2*p}], v[{SR+2*p}:{SR+1+2*p}], s[68:69] op_sel_hi:[1,0]"
    if wod == 8: issue_upto(20, 20)
    a(f"""
{"" if wod == 8 else "s_nop 6"}
v_max3_f32 v{M}, v{SR}, v{SR+1}, v{SR+2}
v_max3_f32 v{L}, v{SR+3}, v{SR+4}, v{SR+5}
v_max3_f32 v{M}, v{M}, v{SR+6}, v{SR+7}
v_max_f32 v{M}, v{M}, v{L}
v_mov_b32 v{L}, v{M}
{rnd(0)}
{rnd(1)}
v_permlane16_swap_b32 v{M}, v{L}
{rnd(2)}
{rnd(3)}
v_max_f32 v{M}, v{M}, v{L}
v_mov_b32 v{L}, v{M}
{rnd(4)}
{rnd(5)}
v_permlane32_swap_b32 v{M}, v{L}
{rnd(6)}
{rnd(7)}
v_max_f32 v{M}, v{M}, v{L}
{scl(0)}
v_cvt_pk_bf16_f32 v{M}, 0, v{M}
{scl(1)}
v_mul_f32 v{M}, s68, v{M}
{scl(2)}
v_cvt_pk_bf16_f32 v{M}, 0, v{M}
{scl(3)}
v_mul_f32 v{M}, s69, v{M}
""")
    for p in range(8): a(rnd(p))
    for p in range(4): a(f"v_pk_fma_f32 v[{SR+2*p}:{SR+1+2*p}], v[{SR+2*p}:{SR+1+2*p}], s[68:69], v[{M}:{M+1}] op_sel:[0,1,0] op_sel_hi:[1,1,0] neg_lo:[0,0,1] neg_hi:[0,0,1]")
    for p in range(8): a(f"v_exp_f32 v{SR+p}, v{SR+p}")
    if wod == 3: issue_upto(20, 20)
    for p in range(4): a(f"v_cvt_pk_bf16_f32 v{PR+p}, v{SR+2*p}, v{SR+1+2*p}")
    cm = [f"v_cndmask_b32 v{QR+4*dl+p}, 0, v{PR+p}, s[{58+2*dl}:{59+2*dl}]" for dl in range(4) for p in range(4)]
    a(f"""
v_pk_add_f32 v[{SR}:{SR+1}], v[{SR}:{SR+1}], v[{SR+2}:{SR+3}]
v_pk_add_f32 v[{SR+4}:{SR+5}], v[{SR+4}:{SR+5}], v[{SR+6}:{SR+7}]
v_pk_add_f32 v[{SR}:{SR+1}], v[{SR}:{SR+1}], v[{SR+4}:{SR+5}]
v_add_f32 v{L}, v{SR}, v{SR+1}
v_mov_b32 v{T}, v{L}
""")
    a("\n".join(cm[:4]))
    a(f"v_permlane16_swap_b32 v{L}, v{T}\n{cm[4]}\nv_add_f32 v{L}, v{L}, v{T}\nv_mov_b32 v{T}, v{L}")
    a("\n".join(cm[5:8]))
    a(f"v_permlane32_swap_b32 v{L}, v{T}\n{cm[8]}\nv_add_f32 v{L}, v{L}, v{T}")
    a(f"s_mov_b64 exec, 0x1111\nds_write_b64 v12, v[{M}:{L}] offset:{ML}")
    if bpre: a("s_mov_b64 exec, 1\nds_add_u32 v14, v13 offset:12")
    a("s_mov_b64 exec, -1")
    a("\n".join(cm[9:]))
    stamp(7)
    if wod == 4: issue_upto(20, 20)
    if wh: issue_upto(16 + wh, 20)
    wait_done(NV)
    stamp(5)
    if wod == 2: issue_upto(20, 20)
    def pvm(t):
        c = "0" if t % 4 == 0 else f"v[{16+4*(t//4)}:{19+4*(t//4)}]"
        return f"v_mfma_f32_16x16x32_bf16 v[{16+4*(t//4)}:{19+4*(t//4)}], v[{FR+4*t}:{FR+3+4*t}], v[{QR+4*(t%4)}:{QR+3+4*(t%4)}], {c}"
    if vp2:
        for t in (0, 4, 1, 5, 2, 6, 3, 7): a(pvm(t))
        a(f"s_nop 6\nds_write_b128 v11, v[16:19] offset:{OP}")
    else:
        for t in range(8):
            j = t // 2; sel = "s40" if t % 2 == 0 else "s41"
            a(f"v_perm_b32 v{FR+2+4*t}, v{VR+20+j}, v{VR+16+j}, {sel}\nv_perm_b32 v{FR+3+4*t}, v{VR+28+j}, v{VR+24+j}, {sel}")
            if t >= 1: a(pvm(t-1))
        a(f"ds_write_b128 v11, v[16:19] offset:{OP}")
        a(pvm(7))
        if wod == 7: issue_upto(20, 20); a("s_nop 0")
        else: a("s_nop 7")
    a(f"""
ds_write_b128 v11, v[20:23] offset:{OP+1024}
""")
    if wod == 5: issue_upto(20, 20)
    a("s_waitcnt lgkmcnt(0)")
    stamp(8)
    a("s_barrier")
    if wod == 9:
        if wk: a(f"s_sleep {wk}")
        issue_upto(20, 20)
    def woperm():
        a(f"s_waitcnt vmcnt({2 if opre else 0})")
        for t in range(8):
            j = t // 2; sel = "s40" if t % 2 == 0 else "s41"
            a(f"v_perm_b32 v{FR+2*t}, v{WR+4+j}, v{WR+j}, {sel}\nv_perm_b32 v{FR+1+2*t}, v{WR+12+j}, v{WR+8+j}, {sel}")
    if not opre: woperm()
    def dq(d, k): return f"v_add_f32_dpp v{d}, v{d}, v{d} quad_perm:{['[1,0,3,2]', '[2,3,0,1]'][k]} row_mask:0xf bank_mask:0xf"
    def opost(R):
        a(f"""
v_max_f32 v24, v{R+2}, v{R+6}
v_lshlrev_b32 v26, 16, v{R}
v_and_b32 v27, 0xffff0000, v{R}
v_max_f32_dpp v24, v24, v24 quad_perm:[1,0,3,2] row_mask:0xf bank_mask:0xf
v_lshlrev_b32 v28, 16, v{R+1}
v_and_b32 v29, 0xffff0000, v{R+1}
v_max_f32_dpp v24, v24, v24 quad_perm:[2,3,0,1] row_mask:0xf bank_mask:0xf
v_lshlrev_b32 v30, 16, v{R+4}
v_sub_f32 v18, v{R+2}, v24
v_sub_f32 v22, v{R+6}, v24
v_exp_f32 v18, v18
v_and_b32 v31, 0xffff0000, v{R+4}
v_exp_f32 v22, v22
v_lshlrev_b32 v32, 16, v{R+5}
v_and_b32 v33, 0xffff0000, v{R+5}
""")
    if om:
        mpoll("o", 2048, os0, od, False, FBO, [48, 56, 64][:om], 0, woperm); opost(16)
    elif on:
        ppoll("o", 2048, os0, od, False, FBO, [48, 56, 64, 72][:on], 0, opost)
    else:
        poll("o", 2048, os0, os_, False, FBO, woperm if opre else None); opost(16)
    stamp(9)
    a(f"""
v_add_f32 v24, v18, v22
v_pk_mul_f32 v[26:27], v[26:27], v[18:19] op_sel_hi:[1,0]
v_pk_mul_f32 v[28:29], v[28:29], v[18:19] op_sel_hi:[1,0]
v_add_f32_dpp v24, v24, v24 quad_perm:[1,0,3,2] row_mask:0xf bank_mask:0xf
v_pk_fma_f32 v[26:27], v[30:31], v[22:23], v[26:27] op_sel_hi:[1,0,1]
v_pk_fma_f32 v[28:29], v[32:33], v[22:23], v[28:29] op_sel_hi:[1,0,1]
v_add_f32_dpp v24, v24, v24 quad_perm:[2,3,0,1] row_mask:0xf bank_mask:0xf
""")
    a(dq(26, 0) + "\nv_rcp_f32 v24, v24")
    for e in (27, 28, 29): a(dq(e, 0))
    for e in (26, 27, 28, 29): a(dq(e, 1))
    a("""
v_pk_mul_f32 v[26:27], v[26:27], v[24:25] op_sel_hi:[1,0]
v_pk_mul_f32 v[28:29], v[28:29], v[24:25] op_sel_hi:[1,0]
v_cvt_pk_bf16_f32 v8, v26, v27
v_cvt_pk_bf16_f32 v9, v28, v29
""")
    for dl in range(4):
        for p in range(2):
            a(f"v_cndmask_b32 v{40+2*dl+p}, 0, v{8+p}, s[{58+2*dl}:{59+2*dl}]")
    for dl in (0, 2):
        for j in range(2):
            t = 4*j + dl
            c = "0" if dl == 0 else f"v[{128+4*j}:{131+4*j}]"
            a(f"v_mfma_f32_16x16x32_bf16 v[{128+4*j}:{131+4*j}], v[{40+2*dl}:{43+2*dl}], v[{FR+2*t}:{FR+3+2*t}], {c}")
    a(f"""
s_nop 6
ds_write_b128 v11, v[128:131] offset:{WP}
ds_write_b128 v11, v[132:135] offset:{WP+1024}
s_waitcnt lgkmcnt(0)
""")
    stamp(10)
    a("s_barrier")
    if stamps:
        stamp(11)
        flush_stamps(range(0, 12))
    a("s_endpgm")
    a(f"""L_C:
s_lshr_b32 s38, s32, 1
s_mul_i32 s38, s38, {XS}
v_lshl_add_u32 v7, v1, 4, s38
s_and_b32 s39, s47, 0x3ff
s_add_u32 s38, s38, s39
v_and_b32 v8, 7, v0
v_lshl_add_u32 v8, v8, 1, s38
s_mov_b32 s44, {f2u(1.0/512):#x}
s_mov_b32 s45, {f2u(1e-5):#x}
s_mov_b32 s48, 0x3f803f80
v_mov_b32 v24, 0
v_mov_b32 v25, 0
v_mov_b32 v26, 0
v_mov_b32 v27, 0
s_sleep 8
""")
    stamp(1)
    ldsspin("C")
    stamp(2)
    for i in range(4): a(f"ds_read_b128 v[{56+4*i}:{59+4*i}], v7 offset:{XN+256*i}")
    a(f"ds_read_u16 v28, v8 offset:{XN}")
    a("s_waitcnt lgkmcnt(0)")
    for i in range(16):
        a(f"v_dot2c_f32_bf16 v{24+(i%2)}, s48, v{56+i}\nv_dot2c_f32_bf16 v{26+(i%2)}, v{56+i}, v{56+i}")
    a("v_lshlrev_b32 v28, 16, v28\ns_nop 1")
    a("v_add_f32 v24, v24, v25\nv_add_f32 v26, v26, v27")
    for r in (8, 4, 2, 1): a("s_nop 0\n" + dpp("add", 24, r) + "\n" + dpp("add", 26, r))
    a("""
v_mul_f32 v24, s44, v24
v_mul_f32 v26, s44, v26
v_fma_f32 v26, -v24, v24, v26
v_max_f32 v26, 0, v26
""")
    bfround(24, 24); bfround(26, 26)
    a("v_add_f32 v26, s45, v26\nv_sub_f32 v28, v28, v24")
    bfround(26, 26)
    a("v_sqrt_f32 v26, v26")
    bfround(28, 28); bfround(26, 26)
    a("v_rcp_f32 v26, v26\ns_nop 0\nv_mul_f32 v28, v28, v26")
    bfround(28, 28)
    a("s_cmp_ge_u32 s36, 10\ns_cbranch_scc1 L_cw0\ns_waitcnt vmcnt(2)\ns_branch L_cw1\nL_cw0:\ns_waitcnt vmcnt(0)\nL_cw1:" if prewarm else "s_waitcnt vmcnt(0)")
    for (src, dst) in ((80, 32), (84, 40), (88, 48)):
        for p in range(4): a(f"v_lshlrev_b32 v{dst+2*p}, 16, v{src+p}\nv_and_b32 v{dst+1+2*p}, 0xffff0000, v{src+p}")
    for b in range(8): a(f"v_readlane_b32 s{64+b}, v28, {b}")
    a(f"s_mov_b32 s44, {f2u(C1):#x}\nv_mov_b32 v14, {f2u(C0):#x}")
    stamp(3)
    U, T, Z = 56, 64, 72
    a("s_mov_b32 s46, 0\nL_gate:\ns_mov_b32 m0, s46\ns_nop 0\ns_movrels_b32 s72, s64")
    for p in range(4): a(f"v_pk_fma_f32 v[{U+2*p}:{U+1+2*p}], s[72:73], v[{32+2*p}:{33+2*p}], v[{40+2*p}:{41+2*p}] op_sel_hi:[0,1,1]")
    for p in range(4): a(f"v_pk_mul_f32 v[{T+2*p}:{T+1+2*p}], v[{U+2*p}:{U+1+2*p}], v[{U+2*p}:{U+1+2*p}]")
    for p in range(4): a(f"v_pk_fma_f32 v[{T+2*p}:{T+1+2*p}], v[{T+2*p}:{T+1+2*p}], s[44:45], v[14:15] op_sel_hi:[1,0,0]")
    for p in range(4): a(f"v_pk_mul_f32 v[{T+2*p}:{T+1+2*p}], v[{T+2*p}:{T+1+2*p}], v[{U+2*p}:{U+1+2*p}]")
    for p in range(8): a(f"v_exp_f32 v{T+p}, v{T+p}")
    for p in range(4): a(f"v_pk_mul_f32 v[{U+2*p}:{U+1+2*p}], v[{U+2*p}:{U+1+2*p}], v[{48+2*p}:{49+2*p}]")
    for p in range(4): a(f"v_pk_add_f32 v[{T+2*p}:{T+1+2*p}], v[{T+2*p}:{T+1+2*p}], 1.0 op_sel_hi:[1,0]")
    for p in range(8): a(f"v_rcp_f32 v{T+p}, v{T+p}")
    a(f"v_pk_mul_f32 v[{Z}:{Z+1}], v[{U}:{U+1}], v[{T}:{T+1}]")
    for p in range(1, 4): a(f"v_pk_fma_f32 v[{Z}:{Z+1}], v[{U+2*p}:{U+1+2*p}], v[{T+2*p}:{T+1+2*p}], v[{Z}:{Z+1}]")
    a(f"s_set_gpr_idx_on s46, gpr_idx(DST)\ns_nop 0\nv_add_f32 v16, v{Z}, v{Z+1}\ns_set_gpr_idx_off")
    a("s_add_u32 s46, s46, 1\ns_cmp_lt_u32 s46, 8\ns_cbranch_scc1 L_gate")
    reduce8(16, 20)
    a(f"""
v_and_b32 v8, 1, v0
v_lshl_add_u32 v8, v6, 1, v8
v_lshlrev_b32 v8, 4, v8
s_lshl_b32 s38, s37, 2
v_add_u32 v9, s38, v8
ds_write_b32 v9, v16 offset:{GG}
s_waitcnt vmcnt(0) lgkmcnt(0)
""")
    stamp(4)
    if stamps: a("s_barrier\ns_barrier" + ("\ns_barrier" if qb else ""))
    flush_stamps(range(0, 5))
    a("L_end:\ns_endpgm")
    return wrap(a.text().replace("CODELEN", "L_end-L_C0-4"), 256, 768, lds, 160)

if __name__ == "__main__":
    import ast
    open("k6.s", "w").write(gen(stamps=False))
    for arg in sys.argv[1:]:
        name, kw = arg.split("=", 1)
        open(name + ".s", "w").write(gen(**eval("dict(" + kw + ")")))
```

```python
import sys, math, struct
from asmlib import *

def f2u(x): return struct.unpack("<I", struct.pack("<f", x))[0]
LOG2E = 1.4426950408889634
C0 = -2.0 * LOG2E * math.sqrt(2.0 / math.pi)
C1 = C0 * 0.044715
SCALE = 128 ** -0.5

XS = 1088
XN = 0x0000; QP = 0x1200; QPW = 5184; QQ = 0x6400; QS = 320; OP = 0x6A00; ML = 0x8A00; WP = 0x8B00; GG = 0xAB00; CNT = 0xAC00
QG = 0x100; OG = 0x80100; FG = 0x100100

def gen(stamps=False, W=6, W0=4, step=2, NT=" nt", lds=44160, spin=200000, prewarm=True, qwarm=False, qs0=16, qs=4, os0=8, os_=1, fs0=18, fs=2, prio=True, fast=True, NF=16, NFQ=4, wod=2, qa=0, ms=0, mp=0, rn=1, wk=3, wh=0, tt=0, NQ=' nt', NO=' nt', NK=' nt', cl=2, f1=5, vp2=0, qb=1, cln=0, fsf='', st4=1, fsl=2, f2=0, xb=0, spz=1, ap=0, fl=(12,(5,16)), om=0, fm=2, ofd=0, bpre=1, opf=0, opre=1, rate=None, bp=3, sched=None, pf=0, codelen=7168, il=2, vc=0, hp=0, kx=0, early=False, tlb=0, qn=0, qd=16, on=0, od=2, fn=2, fd=6):
    FBQ = 0x40000; FBO = 0x100000
    FS = fsf if fast else ' sc1'
    a = Asm()
    def stamp(i):
        if stamps: a(f"s_memrealtime s[{76+2*i}:{77+2*i}]")
    def flush_stamps(idx):
        if not stamps: return
        a("s_waitcnt lgkmcnt(0)\ns_mov_b64 exec, 1\ns_mul_i32 s3, s2, 12\ns_add_u32 s3, s3, s36\ns_lshl_b32 s3, s3, 7\ns_add_u32 s48, s28, s3\ns_addc_u32 s49, s29, 0\ns_add_u32 s48, s48, 0x8000000\ns_addc_u32 s49, s49, 0\nv_mov_b32 v0, 0")
        for i in idx:
            a(f"v_mov_b32 v2, s{76+2*i}\nv_mov_b32 v3, s{77+2*i}\nglobal_store_dwordx2 v0, v[2:3], s[48:49] offset:{8*i}")
    def dpp(op, d, r): return f"v_{op}_f32_dpp v{d}, v{d}, v{d} row_ror:{r} row_mask:0xf bank_mask:0xf"
    def allreduce(v, t, op="add"):
        for r in (8, 4, 2, 1): a("s_nop 1\n" + dpp(op, v, r))
        for sw in (16, 32):
            a(f"v_mov_b32 v{t}, v{v}\ns_nop 1\nv_permlane{sw}_swap_b32 v{v}, v{t}\ns_nop 0\nv_{op}_f32 v{v}, v{v}, v{t}")
    def reduce8(A, B, sel=True):
        for r in range(4): a(f"v_permlane32_swap_b32 v{A+r}, v{B+r}")
        for r in range(4): a(f"v_add_f32 v{A+r}, v{A+r}, v{B+r}")
        a("s_mov_b32 vcc_lo, 0xAAAAAAAA")
        a(f"v_permlane16_swap_b32 v{A}, v{A+2}\nv_permlane16_swap_b32 v{A+1}, v{A+3}\ns_mov_b32 vcc_hi, 0xAAAAAAAA")
        a(f"v_add_f32 v{A}, v{A}, v{A+2}\nv_add_f32 v{A+1}, v{A+1}, v{A+3}")
        for r in (8, 4, 2, 1):
            a("s_nop 0\n" + dpp("add", A, r) + "\n" + dpp("add", A+1, r))
        if sel: a(f"v_cndmask_b32 v{A}, v{A}, v{A+1}, vcc")
    def pack24(v):
        for r in range(4):
            if rn: a(f"v_add_u32 v{v+r}, 0x80, v{v+r}")
        for r in range(4): a(f"v_mov_b32_sdwa v{v+r}, s30 dst_sel:BYTE_0 dst_unused:UNUSED_PRESERVE src0_sel:BYTE_{r}")
        a("s_nop 0")
    def tag24(v, t, u):
        a(f"v_perm_b32 v{t}, v{v+1}, v{v}, s42\nv_perm_b32 v{u}, v{v+3}, v{v+2}, s43\nv_or_b32 v{t}, v{t}, v{u}")
    def bfround(d, s):
        a(f"v_cvt_pk_bf16_f32 v{d}, 0, v{s}")
    def ppoll(name, off2, s0, d, t24, FBK, sets, tmp, post):
        n = len(sets)
        def issue(r): a(f"global_load_dwordx4 v[{r}:{r+3}], v10, s[50:51] sc1\nglobal_load_dwordx4 v[{r+4}:{r+7}], v10, s[50:51] offset:{off2} sc1")
        if s0: a(f"s_sleep {s0}")
        a(f"s_mov_b32 s38, {spin}")
        for i, r in enumerate(sets):
            issue(r)
            if i < n - 1 and d: a(f"s_sleep {d}")
        a(f"L_{name}poll:")
        for i, r in enumerate(sets):
            a(f"s_waitcnt vmcnt({2*(n-1)})")
            if t24:
                tag24(r, tmp, tmp+1); tag24(r+4, tmp+2, tmp+3)
                a(f"v_cmp_ne_u32 vcc, s30, v{tmp}\nv_cmp_ne_u32 s[52:53], s30, v{tmp+2}")
            else:
                a(f"v_cmp_ne_u32 vcc, s30, v{r+3}\nv_cmp_ne_u32 s[52:53], s30, v{r+7}")
            a(f"s_or_b64 s[52:53], vcc, s[52:53]\ns_cbranch_scc0 L_{name}ok{i}")
            issue(r)
        if FBK and fast:
            a(f"s_cmp_eq_u32 s38, {spin-NFQ}\ns_cselect_b32 s39, {FBK}, 0\ns_add_u32 s50, s50, s39\ns_addc_u32 s51, s51, 0")
        a(f"s_sub_u32 s38, s38, 1\ns_cbranch_scc0 L_{name}poll")
        for i, r in list(enumerate(sets))[::-1]:
            a(f"L_{name}ok{i}:")
            post(r)
            if i > 0: a(f"s_branch L_{name}done")
        a(f"L_{name}done:")
    def mpoll(name, off2, s0, d, t24, FBK, sets, tmp, pre=None):
        n = len(sets)
        def issue(r): a(f"global_load_dwordx4 v[{r}:{r+3}], v10, s[50:51] sc1\nglobal_load_dwordx4 v[{r+4}:{r+7}], v10, s[50:51] offset:{off2} sc1")
        if s0: a(f"s_sleep {s0}")
        a(f"s_mov_b32 s38, {spin}\ns_mov_b64 s[66:67], -1")
        for i, r in enumerate(sets):
            issue(r)
            if i == 0 and pre: pre()
            if i < n - 1 and d: a(f"s_sleep {d}")
        a(f"L_{name}poll:")
        for i, r in enumerate(sets):
            a(f"s_waitcnt vmcnt({2*(n-1)})")
            if t24:
                tag24(r, tmp, tmp+1); tag24(r+4, tmp+2, tmp+3)
                a(f"v_cmp_ne_u32 vcc, s30, v{tmp}\nv_cmp_ne_u32 s[52:53], s30, v{tmp+2}")
                for k in range(8): a(f"v_and_b32 v{16+k}, v15, v{r+k}")
            else:
                a(f"v_cmp_ne_u32 vcc, s30, v{r+3}\nv_cmp_ne_u32 s[52:53], s30, v{r+7}")
                for k in (0, 2, 4, 6): a(f"v_mov_b64 v[{16+k}:{17+k}], v[{r+k}:{r+k+1}]")
            a(f"s_or_b64 exec, vcc, s[52:53]\ns_cbranch_execz L_{name}done")
            issue(r)
        if FBK and fast:
            a(f"s_cmp_eq_u32 s38, {spin-NF}\ns_cselect_b32 s39, {FBK}, 0\ns_add_u32 s50, s50, s39\ns_addc_u32 s51, s51, 0")
        a(f"s_sub_u32 s38, s38, 1\ns_cbranch_scc0 L_{name}poll\nL_{name}done:\ns_mov_b64 exec, -1")
    def poll(name, off2, s0, s1, t24, fb=False, pre=None):
        FBK = fb
        if s0: a(f"s_sleep {s0}")
        a(f"""
s_mov_b32 s38, {spin}
""")
        LD = f"global_load_dwordx4 v[16:19], v10, s[50:51] sc1\nglobal_load_dwordx4 v[20:23], v10, s[50:51] offset:{off2} sc1"
        if pre:
            a(LD); pre(); a(f"s_branch L_{name}chk")
        a(f"L_{name}poll:\n{LD}\nL_{name}chk:\ns_waitcnt vmcnt(0)")
        if t24:
            tag24(16, 24, 25); tag24(20, 26, 27)
            a("v_cmp_ne_u32 vcc, s30, v24\nv_cmp_ne_u32 s[52:53], s30, v26")
        else:
            a("v_cmp_ne_u32 vcc, s30, v19\nv_cmp_ne_u32 s[52:53], s30, v23")
        a(f"""
s_or_b64 exec, vcc, s[52:53]
s_cbranch_execz L_{name}done
{"s_sleep %d" % s1 if s1 else ""}
{f"s_cmp_eq_u32 s38, {spin-NF}; s_cselect_b32 s39, {FBK}, 0; s_add_u32 s50, s50, s39; s_addc_u32 s51, s51, 0".replace("; ", chr(10)) if fb and fast else ""}
s_sub_u32 s38, s38, 1
s_cbranch_scc0 L_{name}poll
L_{name}done:
s_mov_b64 exec, -1
""")

    def ldsspin(nm, off=4, ar=12, thr=4):
        a(f"""
s_mov_b32 s39, {spin}
L_spin{nm}:
{f"s_sleep {spz}" if spz and nm in "FC" else ""}
ds_read_b32 v13, v{ar} offset:{off}
s_sub_u32 s39, s39, 1
s_cbranch_scc1 L_spind{nm}
s_waitcnt lgkmcnt(0)
v_readfirstlane_b32 s38, v13
s_cmp_lt_u32 s38, {thr}
s_cbranch_scc1 L_spin{nm}
L_spind{nm}:
""")
    def pubbases(mid=""):
        a(f"""
s_lshl_b32 s54, s32, 5
s_add_u32 s54, s54, s33
s_lshl_b32 s54, s54, 11
s_add_u32 s54, s54, {OG}
s_and_b32 s56, s33, 3
s_lshl_b32 s56, s56, 3
s_add_u32 s56, s56, s32
s_lshl_b32 s56, s56, 3
s_lshr_b32 s39, s33, 2
s_add_u32 s56, s56, s39
s_lshl_b32 s56, s56, 11
s_add_u32 s56, s56, {FG}
{mid}
s_add_u32 s54, s28, s54
s_addc_u32 s55, s29, 0
s_add_u32 s56, s28, s56
s_addc_u32 s57, s29, 0
""")
    a("""
""")
    stamp(0)
    a(f"""
s_cmp_ge_u32 s2, 256
s_cbranch_scc1 L_end
s_load_dwordx16 s[4:19], s[0:1], 0
s_load_dwordx8 s[20:27], s[0:1], 64
s_load_dwordx2 s[28:29], s[0:1], 96
v_lshrrev_b32 v1, 6, v0
v_and_b32 v2, 0xff, v0
v_and_b32 v0, 63, v0
v_readfirstlane_b32 s36, v1
s_and_b32 s32, s2, 7
s_lshr_b32 s33, s2, 3
s_lshr_b32 s34, s2, 6
s_and_b32 s35, s33, 7
v_lshlrev_b32 v2, 4, v2
v_and_b32 v1, 15, v0
v_lshrrev_b32 v6, 4, v0
s_mov_b32 s40, 0x05040100
s_mov_b32 s41, 0x07060302
s_and_b32 s37, s36, 3
s_lshl_b32 s47, s32, 5
s_add_u32 s47, s47, s33
s_lshl_b32 s47, s47, 4
s_cmp_lt_u32 s36, 4
s_cbranch_scc1 L_B
s_cmp_ge_u32 s36, 8
s_cbranch_scc1 L_C0
""")
    KR, VR, WR, FR, QR, SR, PR = 16, 48, 80, 96, 128, 144, 152
    loads = []
    for t in range(2):
        for s in range(4):
            r = KR + (t*4+s)*4
            loads.append(f"global_load_dwordx4 v[{r}:{r+3}], v3, s[6:7] offset:{t*4096-4096+s*64}{NT}" if not il else f"global_load_dwordx4 v[{r}:{r+3}], v{8 if kx and s >= 2 else 3}, s[{6+64*t}:{7+64*t}] offset:{(s*64) % (128 if kx else 256)}{NK}")
    for t in range(2):
        for s in range(4):
            r = VR + (t*4+s)*4
            loads.append(f"global_load_dwordx4 v[{r}:{r+3}], v4, s[8:9] offset:{t*4096-4096+s*256}{NT}" if not il else f"global_load_dwordx4 v[{r}:{r+3}], v{15 if vc else 4}, s[{8+64*t}:{9+64*t}] offset:{s*(1024 if vc else 256)}{NT}")
    for i in range(4):
        loads.append(f"global_load_dwordx4 v[{WR+4*i}:{WR+3+4*i}], v5, s[12:13]{NO}" + ("\nv_add_u32 v5, 0x2000, v5" if i < 3 else ""))
    WOB = """s_lshr_b32 s46, s33, 2
s_lshl_b32 s38, s32, 19
s_and_b32 s39, s46, 1
s_lshl_b32 s39, s39, 18
s_add_u32 s38, s38, s39
s_and_b32 s39, s37, 1
s_lshl_b32 s39, s39, 17
s_add_u32 s38, s38, s39
s_lshr_b32 s39, s46, 1
s_lshl_b32 s39, s39, 15
s_add_u32 s38, s38, s39
s_lshr_b32 s39, s37, 1
s_lshl_b32 s39, s39, 12
s_add_u32 s38, s38, s39
s_and_b32 s39, s33, 3
s_lshl_b32 s39, s39, 8
s_add_u32 s38, s38, s39
v_lshlrev_b32 v4, 4, v1
v_lshl_add_u32 v4, v6, 10, v4
v_add_u32 v5, s38, v4
"""
    SH = 0
    if tlb >= 1: loads = [loads[0], loads[15]] + loads[1:15] + loads[16:]; SH = 1
    if tlb >= 2: loads = loads[:2] + [loads[16]] + loads[2:16] + loads[17:]; SH = 2
    NV = 16 + (1 if tlb >= 2 else 0)
    NL = NV if wod else 20
    st = dict(issued=0, done=0)
    def issue_upto(n, lim=None):
        while st["issued"] < min(n, lim or NL):
            a(loads[st["issued"]]); st["issued"] += 1
    def wait_done(n):
        if n > st["done"]:
            a(f"s_waitcnt vmcnt({st['issued']-n})"); st["done"] = n
    a(f"""
s_lshl_b32 s44, s34, 3
s_add_u32 s44, s44, s32
s_lshl_b32 s44, s44, 20
s_lshl_b32 s45, s35, {[15, 15, 14][il]}
s_add_u32 s44, s44, s45
s_lshl_b32 s45, s37, {[13, 12, 12][il]}
s_add_u32 s44, s44, s45
s_add_u32 s44, s44, {0xC0000 if il else 0xC1000}
{"v_and_b32 v3, 3, v1; v_lshlrev_b32 v3, 10, v3; v_lshrrev_b32 v8, 2, v1; v_lshl_add_u32 v3, v8, 8, v3; v_lshlrev_b32 v15, 4, v0".replace("; ", chr(10)) if vc else "v_lshlrev_b32 v3, 8, v1"}
v_lshl_add_u32 v3, v6, 4, v3
{"s_and_b32 s45, s37, 1; s_lshl_b32 s45, s45, 7; v_add_u32 v3, s45, v3; v_xor_b32 v8, 0x80, v3".replace("; ", chr(10)) if kx else ""}
{f"s_bfe_u32 s45, {'s36' if hp > 8 else 's2'}, {0x10000 + (hp % 8)}; s_lshl_b32 s45, s45, 17; s_add_u32 s44, s44, s45; s_xor_b32 s45, s44, 0x20000".replace("; ", chr(10)) if hp else f"s_add_u32 s45, s44, {[0, 0x4000, 0x20000][il]}"}
{WOB}
s_waitcnt lgkmcnt(0)
s_load_dword s30, s[28:29], 0
s_add_u32 s70, s6, s45
s_addc_u32 s71, s7, 0
s_add_u32 s6, s6, s44
s_addc_u32 s7, s7, 0
s_add_u32 s72, s8, s45
s_addc_u32 s73, s9, 0
s_add_u32 s8, s8, s44
s_addc_u32 s9, s9, 0
""")
    if xb: a("s_barrier")
    if not early: a("s_barrier")
    issue_upto(W0)
    if tt:
        a("s_cmp_lg_u32 s36, 7\ns_cbranch_scc1 L_nott\ns_mov_b64 exec, 1")
        a("global_load_dword v159, v4, s[8:9] nt")
        if tt >= 2: a("global_load_dword v159, v5, s[12:13] nt")
        a("s_mov_b64 exec, -1\nL_nott:")
    if early: a("s_barrier")
    a(f"""s_branch L_A
L_C0:
{"s_getpc_b64 s[60:61]; s_and_b32 s60, s60, 0xffffff00; v_lshlrev_b32 v16, 3, v2; v_mov_b32 v17, s61; v_min_u32 v16, CODELEN, v16; v_add_co_u32 v16, vcc, s60, v16; v_addc_co_u32 v17, vcc, 0, v17, vcc; s_cmp_ge_u32 s36, 10; s_cbranch_scc1 L_nopf; global_load_dword v18, v[16:17], off; L_nopf:".replace("; ", chr(10)) if pf else ""}
v_mov_b32 v12, {CNT}
v_mov_b32 v14, 0
v_mov_b32 v15, 0
ds_write_b64 v12, v[14:15]
ds_write_b64 v12, v[14:15] offset:8
v_cmp_gt_u32 vcc, 0xE00, v2
{chr(10).join(f"v_mov_b32 v{r}, 0" for r in range(80, 96))}
""")
    pubbases("""s_mov_b64 exec, vcc
s_waitcnt lgkmcnt(0)
""" + ("s_barrier" if xb or cl == 1 else "") + """
global_load_dwordx4 v[80:83], v2, s[16:17]
global_load_dwordx4 v[84:87], v2, s[18:19]
global_load_dwordx4 v[88:91], v2, s[20:21]
s_mov_b64 exec, -1""")
    if cl == 2: a("s_barrier")
    if prewarm: a(f"""s_cmp_ge_u32 s36, 10
s_cbranch_scc1 L_nowarm
global_store_dwordx4 v2, v[92:95], s[54:55]{FS}
global_store_dwordx4 v2, v[92:95], s[56:57] sc1
L_nowarm:""")
    a(f"""
{"" if cl else "s_barrier"}
s_branch L_C
L_B:
""")
    if bp: a(f"s_setprio {bp}")
    a(f"""
v_lshrrev_b32 v7, 3, v1
v_lshlrev_b32 v7, 4, v7
v_lshl_add_u32 v7, v6, 2, v7
v_and_b32 v8, 7, v1
v_lshlrev_b32 v8, 4, v8
v_lshl_add_u32 v4, v7, 13, v8
s_lshl_b32 s38, s34, 20
s_lshl_b32 s39, s32, 10
s_add_u32 s38, s38, s39
s_lshl_b32 s39, s35, 7
s_add_u32 s38, s38, s39
s_lshl_b32 s39, s36, 18
s_add_u32 s38, s38, s39
v_add_u32 v4, s38, v4
s_waitcnt lgkmcnt(0)
global_load_dwordx4 v[16:19], v2, s[4:5]
s_load_dword s30, s[28:29], 0
s_load_dword s31, s[22:23], 0
""")
    if xb: a("s_barrier")
    for i in range(4):
        a(f"global_load_dwordx4 v[{64+4*i}:{67+4*i}], v4, s[10:11]{NQ}" + ("\nv_add_u32 v4, 0x2000, v4" if i < 3 else ""))
    a(f"""
s_barrier
v_mov_b32 v12, {CNT}
s_mov_b32 s44, {f2u(1.0/512):#x}
s_mov_b32 s45, {f2u(1e-5):#x}
s_mov_b32 s42, 0x0c0c0400
s_mov_b32 s43, 0x04000c0c
s_mul_i32 s38, s36, {XS}
v_lshlrev_b32 v7, 4, v0
v_add_u32 v7, s38, v7
v_and_b32 v9, 3, v1
v_mul_u32_u24 v10, {XS}, v9
v_bfe_u32 v11, v1, 2, 1
v_lshl_add_u32 v10, v11, 5, v10
v_lshl_add_u32 v10, v6, 3, v10
s_lshl_b32 s38, s34, 8
s_lshl_b32 s39, s36, 6
s_add_u32 s38, s38, s39
v_add_u32 v10, s38, v10
v_mul_u32_u24 v11, 20, v6
v_add_lshl_u32 v11, v11, v1, 4
s_mul_i32 s38, s36, {QPW}
v_add_u32 v11, s38, v11
v_mov_b32 v50, 0
v_mov_b32 v51, 0
v_mov_b32 v52, 0
v_mov_b32 v53, 0
s_lshl_b32 s38, s32, 15
s_lshl_b32 s39, s33, 8
s_add_u32 s38, s38, s39
s_add_u32 s38, s38, {QG}
s_add_u32 s50, s28, s38
s_addc_u32 s51, s29, 0
v_lshlrev_b32 v54, 4, v1
v_lshl_add_u32 v54, v6, 13, v54
s_waitcnt vmcnt(4)
""")
    stamp(1)
    for p in range(4): a(f"v_lshlrev_b32 v{32+2*p}, 16, v{16+p}\nv_and_b32 v{33+2*p}, 0xffff0000, v{16+p}")
    a("""
v_pk_add_f32 v[40:41], v[32:33], v[34:35]
v_pk_add_f32 v[42:43], v[36:37], v[38:39]
v_pk_add_f32 v[40:41], v[40:41], v[42:43]
v_add_f32 v40, v40, v41
""")
    allreduce(40, 41)
    a("v_mul_f32 v40, s44, v40")
    for p in range(4): a(f"v_pk_add_f32 v[{42+2*p}:{43+2*p}], v[{32+2*p}:{33+2*p}], v[40:41] op_sel_hi:[1,0] neg_lo:[0,1] neg_hi:[0,1]")
    a("""
v_pk_mul_f32 v[42:43], v[42:43], v[42:43]
v_pk_fma_f32 v[42:43], v[44:45], v[44:45], v[42:43]
v_pk_fma_f32 v[42:43], v[46:47], v[46:47], v[42:43]
v_pk_fma_f32 v[42:43], v[48:49], v[48:49], v[42:43]
v_add_f32 v42, v42, v43
""")
    bfround(40, 40)
    a("s_nop 0")
    fill = []
    for p in range(4): fill.append(f"v_pk_add_f32 v[{32+2*p}:{33+2*p}], v[{32+2*p}:{33+2*p}], v[40:41] op_sel_hi:[1,0] neg_lo:[0,1] neg_hi:[0,1]")
    for p in range(8): fill.append(f"v_cvt_pk_bf16_f32 v{32+p}, 0, v{32+p}")
    fill += ["s_nop 0", "", "s_nop 0", ""]
    a(dpp("add", 42, 8))
    for r in (4, 2, 1): a(fill.pop(0) + "\n" + fill.pop(0) + "\n" + dpp("add", 42, r))
    for sw in (16, 32):
        a(f"v_mov_b32 v43, v42\n{fill.pop(0)}\n{fill.pop(0)}\nv_permlane{sw}_swap_b32 v42, v43\n{fill.pop(0)}\nv_add_f32 v42, v42, v43")
    a("v_mul_f32 v42, s44, v42")
    bfround(42, 42)
    a("v_add_f32 v42, s45, v42")
    bfround(42, 42)
    a("v_sqrt_f32 v42, v42\n" + fill.pop(0) + "\n" + fill.pop(0))
    bfround(42, 42)
    a("v_rcp_f32 v42, v42\n" + fill.pop(0) + "\n" + fill.pop(0))
    assert not fill
    for p in range(4): a(f"v_pk_mul_f32 v[{32+2*p}:{33+2*p}], v[{32+2*p}:{33+2*p}], v[42:43] op_sel_hi:[1,0]")
    for p in range(4): a(f"v_cvt_pk_bf16_f32 v{16+p}, v{32+2*p}, v{33+2*p}")
    a(f"ds_write_b128 v7, v[16:19] offset:{XN}\nv_mov_b32 v13, 1\ns_mov_b64 exec, 1\ns_waitcnt lgkmcnt(0)\nds_add_u32 v12, v13 offset:4\ns_mov_b64 exec, -1")
    a("s_mul_i32 s30, s30, 0x9E3779B1\ns_add_u32 s30, s30, 0x7F4A7C15\ns_or_b32 s30, s30, 1")
    if qwarm:
        a("s_cmp_lg_u32 s36, 0\ns_cbranch_scc1 L_noqw\ns_not_b32 s38, s30\nv_mov_b32 v40, s38\nv_mov_b32 v41, s38\nv_mov_b32 v42, s38\nv_mov_b32 v43, s38\nglobal_store_dwordx4 v54, v[40:43], s[50:51]" + FS + "\nL_noqw:")
    stamp(2)
    ldsspin("B")
    a(f"""
s_mov_b32 exec_lo, 0x00ff00ff
s_mov_b32 exec_hi, 0x00ff00ff
ds_read_b64 v[50:51], v10 offset:{XN}
s_not_b64 exec, exec
ds_read_b64 v[52:53], v10 offset:{XN}
s_mov_b64 exec, -1
s_waitcnt vmcnt(0)
""")
    stamp(3)
    for t in range(8):
        j = t // 2; sel = "s40" if t % 2 == 0 else "s41"
        a(f"v_perm_b32 v{80+2*t}, v{68+j}, v{64+j}, {sel}\nv_perm_b32 v{81+2*t}, v{76+j}, v{72+j}, {sel}")
    a("s_waitcnt lgkmcnt(0)")
    for j in range(4):
        a(f"v_mfma_f32_16x16x32_bf16 v[{96+4*j}:{99+4*j}], v[{80+4*j}:{83+4*j}], v[50:53], 0")
    a(f"""
v_bfe_u32 v14, v1, 1, 2
v_mul_u32_u24 v14, 81, v14
v_lshrrev_b32 v15, 3, v1
v_mul_u32_u24 v15, 20, v15
v_add3_u32 v14, v14, v15, v6
v_and_b32 v15, 1, v1
v_lshl_add_u32 v14, v15, 3, v14
v_lshlrev_b32 v14, 4, v14
""")
    for j in range(4):
        a(f"ds_write_b128 v11, v[{96+4*j}:{99+4*j}] offset:{QP+81*16*j}")
    a(f"""
v_mov_b32 v13, 1
s_mov_b64 exec, 1
s_waitcnt lgkmcnt(0)
ds_add_rtn_u32 v13, v12, v13
s_mov_b64 exec, -1
s_waitcnt lgkmcnt(0)
v_readfirstlane_b32 s38, v13
s_cmp_lg_u32 s38, 3
s_cbranch_scc1 L_noqpub
""")
    for s in range(8):
        a(f"ds_read_b128 v[{64+4*s}:{67+4*s}], v14 offset:{QP+QPW*(s//2)+(s%2)*44*16}")
    for s in range(4):
        a(f"s_waitcnt lgkmcnt({6-2*s})")
        a(f"v_pk_add_f32 v[{64+8*s}:{65+8*s}], v[{64+8*s}:{65+8*s}], v[{68+8*s}:{69+8*s}]\nv_pk_add_f32 v[{66+8*s}:{67+8*s}], v[{66+8*s}:{67+8*s}], v[{70+8*s}:{71+8*s}]")
    for (x, y) in ((64, 72), (80, 88), (64, 80)):
        a(f"v_pk_add_f32 v[{x}:{x+1}], v[{x}:{x+1}], v[{y}:{y+1}]\nv_pk_add_f32 v[{x+2}:{x+3}], v[{x+2}:{x+3}], v[{y+2}:{y+3}]")
    pack24(64)
    a("global_store_dwordx4 v54, v[64:67], s[50:51]" + FS)
    if fast: a(f"v_add_u32 v54, {FBQ}, v54\nglobal_store_dwordx4 v54, v[64:67], s[50:51] sc1")
    if fl: a("v_mov_b32 v13, 1\ns_mov_b64 exec, 1\nds_add_u32 v12, v13\ns_mov_b64 exec, -1")
    a("L_noqpub:")
    if qa: a("s_setprio 0"); ldsspin("H", 0, 12, 5); a(f"s_setprio {bp}")
    stamp(4)
    pubbases()
    a(f"""
v_lshrrev_b32 v10, 5, v0
v_lshlrev_b32 v10, 12, v10
v_and_b32 v11, 31, v0
v_lshl_add_u32 v10, v11, 4, v10
s_lshl_b32 s38, s32, 2
s_add_u32 s38, s38, s34
s_lshl_b32 s38, s38, 13
s_lshl_b32 s39, s36, 9
s_add_u32 s38, s38, s39
s_add_u32 s38, s38, {QG}
s_add_u32 s50, s28, s38
s_addc_u32 s51, s29, 0
v_bfe_u32 v11, v0, 3, 2
v_lshlrev_b32 v11, 6, v11
v_lshrrev_b32 v12, 5, v0
v_lshl_add_u32 v11, v12, 5, v11
v_and_b32 v12, 7, v0
v_lshl_add_u32 v11, v12, 1, v11
s_mul_i32 s38, s36, {QS}
v_add_u32 v11, s38, v11
v_mov_b32 v15, 0xffffff00
""")
    def qpost(R):
        for r in range(8): a(f"v_and_b32 v{16+r}, v15, v{R+r}")
    if qn:
        ppoll("q", 2048, qs0, qd, True, FBQ, [64, 72, 80, 88][:qn], 44, qpost)
    else:
        poll("q", 2048, qs0, qs, True, FBQ, (lambda: a(f"v_mov_b32 v12, {CNT}\nv_mov_b32 v13, 1\ns_mov_b64 exec, 1\nds_add_u32 v12, v13 offset:12\ns_mov_b64 exec, -1")) if f2 else None); qpost(16)
    a(f"""
v_pk_add_f32 v[16:17], v[16:17], v[20:21]
v_pk_add_f32 v[18:19], v[18:19], v[22:23]
s_nop 1
v_permlane32_swap_b32 v16, v18
v_permlane32_swap_b32 v17, v19
s_nop 0
v_pk_add_f32 v[16:17], v[16:17], v[18:19]
v_cvt_pk_bf16_f32 v16, v16, v17
ds_write_b16 v11, v16 offset:{QQ}
ds_write_b16_d16_hi v11, v16 offset:{QQ+16}
v_lshrrev_b32 v4, 2, v1
v_lshlrev_b32 v4, 5, v4
v_mov_b32 v12, {CNT}
v_mov_b32 v13, 1
v_mov_b32 v43, s30
""")
    if qb: a("s_waitcnt lgkmcnt(0)")
    else: a("s_mov_b64 exec, 1\ns_waitcnt lgkmcnt(0)\nds_add_u32 v12, v13 offset:8\ns_mov_b64 exec, -1")
    stamp(5)
    if mp != 3: a(f"s_setprio {mp}")
    if qb: a("s_barrier")
    a("s_cmp_eq_u32 s36, 2\ns_cbranch_scc1 L_final")
    a("s_cmp_eq_u32 s36, 3\ns_cbranch_scc1 L_B3")
    if ms: a(f"s_sleep {ms}")
    if bpre: ldsspin("M", 12, 12)
    if prio: a("s_setprio 3")
    if bpre:
        a(f"""
ds_read_b128 v[8:11], v4 offset:{ML}
ds_read_b128 v[12:15], v4 offset:{ML+16}
s_waitcnt lgkmcnt(0)
v_max3_f32 v42, v8, v10, v12
v_max_f32 v42, v42, v14
v_sub_f32 v8, v8, v42
v_sub_f32 v10, v10, v42
v_sub_f32 v12, v12, v42
v_sub_f32 v14, v14, v42
v_exp_f32 v8, v8
v_exp_f32 v10, v10
v_exp_f32 v12, v12
v_exp_f32 v14, v14
v_mul_f32 v9, v8, v9
v_fmac_f32 v9, v10, v11
v_fmac_f32 v9, v12, v13
v_fmac_f32 v9, v14, v15
v_rcp_f32 v34, v9
v_log_f32 v35, v9
v_mul_f32 v8, v8, v34
v_mul_f32 v10, v10, v34
v_mul_f32 v12, v12, v34
v_mul_f32 v14, v14, v34
v_add_f32 v42, v42, v35
s_barrier
""")
        for w in range(4): a(f"ds_read_b128 v[{16+4*w}:{19+4*w}], v2 offset:{OP+2048*w}")
        stamp(6)
        a("""
s_waitcnt lgkmcnt(3)
v_pk_mul_f32 v[16:17], v[16:17], v[8:9] op_sel_hi:[1,0]
v_pk_mul_f32 v[18:19], v[18:19], v[8:9] op_sel_hi:[1,0]
s_waitcnt lgkmcnt(2)
v_pk_fma_f32 v[16:17], v[20:21], v[10:11], v[16:17] op_sel_hi:[1,0,1]
v_pk_fma_f32 v[18:19], v[22:23], v[10:11], v[18:19] op_sel_hi:[1,0,1]
s_waitcnt lgkmcnt(1)
v_pk_fma_f32 v[16:17], v[24:25], v[12:13], v[16:17] op_sel_hi:[1,0,1]
v_pk_fma_f32 v[18:19], v[26:27], v[12:13], v[18:19] op_sel_hi:[1,0,1]
s_waitcnt lgkmcnt(0)
v_pk_fma_f32 v[16:17], v[28:29], v[14:15], v[16:17] op_sel_hi:[1,0,1]
v_pk_fma_f32 v[18:19], v[30:31], v[14:15], v[18:19] op_sel_hi:[1,0,1]
v_cvt_pk_bf16_f32 v40, v16, v17
v_cvt_pk_bf16_f32 v41, v18, v19
""")
    else:
      a(f"""
s_barrier
ds_read_b128 v[8:11], v4 offset:{ML}
ds_read_b128 v[12:15], v4 offset:{ML+16}
""")
      for w in range(4): a(f"ds_read_b128 v[{16+4*w}:{19+4*w}], v2 offset:{OP+2048*w}")
      stamp(6)
      a("""
s_waitcnt lgkmcnt(4)
v_max3_f32 v42, v8, v10, v12
v_max_f32 v42, v42, v14
v_sub_f32 v8, v8, v42
v_sub_f32 v10, v10, v42
v_exp_f32 v8, v8
v_sub_f32 v12, v12, v42
v_exp_f32 v10, v10
v_sub_f32 v14, v14, v42
v_exp_f32 v12, v12
v_mul_f32 v9, v8, v9
v_exp_f32 v14, v14
v_fmac_f32 v9, v10, v11
s_waitcnt lgkmcnt(2)
v_pk_mul_f32 v[16:17], v[16:17], v[8:9] op_sel_hi:[1,0]
v_fmac_f32 v9, v12, v13
v_pk_mul_f32 v[18:19], v[18:19], v[8:9] op_sel_hi:[1,0]
v_fmac_f32 v9, v14, v15
v_pk_fma_f32 v[16:17], v[20:21], v[10:11], v[16:17] op_sel_hi:[1,0,1]
v_rcp_f32 v34, v9
v_pk_fma_f32 v[18:19], v[22:23], v[10:11], v[18:19] op_sel_hi:[1,0,1]
v_log_f32 v35, v9
s_waitcnt lgkmcnt(0)
v_pk_fma_f32 v[16:17], v[24:25], v[12:13], v[16:17] op_sel_hi:[1,0,1]
v_pk_fma_f32 v[18:19], v[26:27], v[12:13], v[18:19] op_sel_hi:[1,0,1]
v_pk_fma_f32 v[16:17], v[28:29], v[14:15], v[16:17] op_sel_hi:[1,0,1]
v_pk_fma_f32 v[18:19], v[30:31], v[14:15], v[18:19] op_sel_hi:[1,0,1]
v_pk_mul_f32 v[16:17], v[16:17], v[34:35] op_sel_hi:[1,0]
v_pk_mul_f32 v[18:19], v[18:19], v[34:35] op_sel_hi:[1,0]
v_add_f32 v42, v42, v35
v_cvt_pk_bf16_f32 v40, v16, v17
v_cvt_pk_bf16_f32 v41, v18, v19
""")
    a("global_store_dwordx4 v2, v[40:43], s[54:55]" + FS)
    if ofd: a(f"s_sleep {ofd}")
    if fast: a(f"s_add_u32 s54, s54, {FBO}\ns_addc_u32 s55, s55, 0\nglobal_store_dwordx4 v2, v[40:43], s[54:55] sc1")
    stamp(7)
    a("s_barrier")
    for w in range(4): a(f"ds_read_b128 v[{16+4*w}:{19+4*w}], v2 offset:{WP+2048*w}")
    stamp(8)
    a("""
s_waitcnt lgkmcnt(2)
v_pk_add_f32 v[16:17], v[16:17], v[20:21]
v_pk_add_f32 v[18:19], v[18:19], v[22:23]
s_waitcnt lgkmcnt(0)
v_pk_add_f32 v[24:25], v[24:25], v[28:29]
v_pk_add_f32 v[26:27], v[26:27], v[30:31]
v_pk_add_f32 v[16:17], v[16:17], v[24:25]
v_pk_add_f32 v[18:19], v[18:19], v[26:27]
""")
    pack24(16)
    a("global_store_dwordx4 v2, v[16:19], s[56:57] sc1")
    if cln: a(f"s_sleep {cln}\ns_sub_u32 s54, s54, {FBO}\ns_subb_u32 s55, s55, 0\nglobal_store_dwordx4 v2, v[40:43], s[54:55] sc1")
    stamp(9)
    if stamps:
        a("L_flushB:")
        flush_stamps(range(0, 12))
    a("s_endpgm")
    a("L_B3:\ns_barrier\ns_barrier\n" + ("s_branch L_flushB" if stamps else "s_endpgm"))
    a(f"""L_final:
v_and_b32 v8, 1, v0
v_lshl_add_u32 v8, v6, 1, v8
v_lshl_add_u32 v3, v8, 1, s47
global_load_ushort v5, v3, s[4:5]
v_lshlrev_b32 v8, 4, v8
s_bfe_u32 s38, s47, 0x20008
s_lshl_b32 s38, s38, 17
s_lshr_b32 s39, s32, 1
s_lshl_b32 s39, s39, 8
s_add_u32 s38, s38, s39
s_and_b32 s39, s47, 0xf0
s_add_u32 s38, s38, s39
s_add_u32 s38, s38, {FG}
s_add_u32 s50, s28, s38
s_addc_u32 s51, s29, 0
v_lshlrev_b32 v10, 11, v0
s_lshl_b32 s31, s31, 16
s_barrier
ds_read_b128 v[32:35], v8 offset:{GG}
s_waitcnt lgkmcnt(0)
v_add_f32 v32, v32, v33
v_add_f32 v34, v34, v35
v_add_f32 v32, v32, v34
""")
    bfround(32, 32)
    a("v_add_f32 v32, s31, v32")
    bfround(32, 32)
    a(f"""
v_mul_f32 v33, {f2u(-LOG2E):#x}, v32
v_exp_f32 v33, v33
s_nop 0
v_add_f32 v33, 1.0, v33
v_rcp_f32 v33, v33
s_nop 0
v_mul_f32 v32, v32, v33
""")
    bfround(32, 32)
    a("s_waitcnt vmcnt(0)\nv_lshlrev_b32 v4, 16, v5\ns_nop 1\nv_mov_b32_dpp v33, v32 quad_perm:[1,0,3,2] row_mask:0xf bank_mask:0xf\nv_mov_b32_dpp v5, v4 quad_perm:[1,0,3,2] row_mask:0xf bank_mask:0xf\ns_barrier")
    if fm:
        mpoll("f", 1024, fs0, fd, True, 0, [96, 104, 112][:fm], 44)
    elif fn:
        ppoll("f", 1024, fs0, fd, True, 0, [96, 104, 112, 120][:fn], 44, qpost)
    else:
        poll("f", 1024, fs0, fs, True); qpost(16)
    stamp(10)
    reduce8(16, 20, False)
    a("""
v_cvt_pk_bf16_f32 v16, 0, v16
v_cvt_pk_bf16_f32 v17, 0, v17
s_mov_b32 exec_lo, 0x00010001
v_pk_mul_f32 v[16:17], v[16:17], v[32:33]
s_mov_b32 exec_hi, 0x00010001
v_cvt_pk_bf16_f32 v16, 0, v16
v_cvt_pk_bf16_f32 v17, 0, v17
v_pk_add_f32 v[16:17], v[16:17], v[4:5]
v_cvt_pk_bf16_f32 v16, v16, v17
global_store_dword v3, v16, s[24:25]
s_cmp_lg_u32 s2, 0
s_cbranch_scc1 L_noep
s_mov_b64 exec, 1
v_mov_b32 v0, 0
v_mov_b32 v1, s30
global_store_dword v0, v1, s[28:29]
L_noep:
""")
    if stamps:
        a("s_waitcnt vmcnt(0)")
        stamp(11)
        a("s_branch L_flushB")
    a("s_endpgm")

    a("L_A:")
    if ap: a(f"s_setprio {ap}")
    stamp(1)
    a(f"""
v_lshrrev_b32 v9, 2, v1
v_mul_u32_u24 v7, {QS}, v9
v_lshl_add_u32 v7, v6, 4, v7
{"s_and_b32 s38, s37, 1; s_lshl_b32 s38, s38, 7; s_xor_b32 s39, s38, 0x80; v_add_u32 v2, s39, v7; v_add_u32 v7, s38, v7".replace("; ", chr(10)) if kx else ""}
s_lshl_b32 s38, s37, 11
v_lshlrev_b32 v11, 4, v0
v_add_u32 v11, s38, v11
s_lshl_b32 s38, s37, 3
v_lshlrev_b32 v12, 5, v9
v_add_u32 v12, s38, v12
v_and_b32 v13, 3, v1
v_lshlrev_b32 v10, 12, v13
v_lshl_add_u32 v10, v9, 14, v10
v_lshl_add_u32 v10, v6, 4, v10
s_lshl_b32 s66, s32, 16
s_lshl_b32 s67, s46, 7
s_add_u32 s66, s66, s67
s_lshr_b32 s67, s37, 1
s_lshl_b32 s67, s67, 10
s_add_u32 s66, s66, s67
s_and_b32 s67, s37, 1
s_lshl_b32 s67, s67, 6
s_add_u32 s66, s66, s67
s_add_u32 s66, s66, {OG}
s_add_u32 s50, s28, s66
s_addc_u32 s51, s29, 0
s_mov_b32 s58, 0x11111111
s_mov_b32 s59, 0x11111111
s_mov_b32 s60, 0x22222222
s_mov_b32 s61, 0x22222222
s_mov_b32 s62, 0x44444444
s_mov_b32 s63, 0x44444444
s_mov_b32 s64, 0x88888888
s_mov_b32 s65, 0x88888888
s_mov_b32 s68, {f2u(SCALE):#x}
s_mov_b32 s69, {f2u(LOG2E):#x}
""")
    d = 1
    if fl:
        a(f"v_mov_b32 v14, {CNT}")
        if fl[0] > W0: ldsspin("F", 0, 14, f1)
        stamp(2); issue_upto(fl[0])
        if f2: ldsspin("G", 12, 14, 4); issue_upto(f2)
        stamp(3)
        for (dn, up) in fl[1:]: wait_done(dn); issue_upto(up)
        assert st["issued"] == NL
    elif rate:
        stamp(2); stamp(3)
        k0, k = rate
        a(f"s_sleep {k0}")
        while st["issued"] < NL:
            wait_done(st["issued"] + 1 - W); issue_upto(st["issued"] + 1)
            if st["issued"] < NL: a(f"s_sleep {k}")
    else:
        wait_done(1); stamp(2)
    if sched:
        stamp(3)
        for (dn, up) in sched: wait_done(dn); issue_upto(up)
        assert st["issued"] == NL
    issue_upto(W + 1)
    while st["issued"] < NL:
        d += step
        wait_done(d); issue_upto(W + d)
        if d - step < 8 + SH <= d: stamp(3)
    stamp(4)
    a("s_waitcnt lgkmcnt(0)\ns_mul_i32 s30, s30, 0x9E3779B1\ns_add_u32 s30, s30, 0x7F4A7C15\ns_or_b32 s30, s30, 1")
    wait_done(12 + SH)
    for t in range(8):
        j = t // 2; sel = "s40" if t % 2 == 0 else "s41"
        a(f"v_perm_b32 v{FR+4*t}, v{VR+4+j}, v{VR+j}, {sel}\nv_perm_b32 v{FR+1+4*t}, v{VR+12+j}, v{VR+8+j}, {sel}")
    if vp2:
        wait_done(NV)
        if wod == 6: issue_upto(20, 20)
        for t in range(8):
            j = t // 2; sel = "s40" if t % 2 == 0 else "s41"
            a(f"v_perm_b32 v{FR+2+4*t}, v{VR+20+j}, v{VR+16+j}, {sel}\nv_perm_b32 v{FR+3+4*t}, v{VR+28+j}, v{VR+24+j}, {sel}")
    a(f"v_mov_b32 v14, {CNT}\nv_mov_b32 v13, 1")
    if prio: a("s_setprio 2")
    if qb: a("s_barrier")
    else: ldsspin("A", 8, 14); a("v_mov_b32 v13, 1")
    for s in range(4):
        a(f"ds_read_b128 v[{QR+4*s}:{QR+3+4*s}], v7 offset:{QQ+64*s}")
    stamp(6)
    if wod == 1: issue_upto(20, 20)
    for s in range(4):
        a(f"s_waitcnt lgkmcnt({3-s})")
        for t in range(2):
            r = KR + (t*4+s)*4
            c = "0" if s == 0 else f"v[{SR+4*t}:{SR+3+4*t}]"
            a(f"v_mfma_f32_16x16x32_bf16 v[{SR+4*t}:{SR+3+4*t}], v[{r}:{r+3}], v[{QR+4*s}:{QR+3+4*s}], {c}")
    M, L, T = 156, 157, 158
    def rnd(p): return f"v_cvt_pk_bf16_f32 v{SR+p}, 0, v{SR+p}"
    def scl(p): return f"v_pk_mul_f32 v[{SR+2*p}:{SR+1+2*p}], v[{SR+2*p}:{SR+1+2*p}], s[68:69] op_sel_hi:[1,0]"
    if wod == 8: issue_upto(20, 20)
    a(f"""
{"" if wod == 8 else "s_nop 6"}
v_max3_f32 v{M}, v{SR}, v{SR+1}, v{SR+2}
v_max3_f32 v{L}, v{SR+3}, v{SR+4}, v{SR+5}
v_max3_f32 v{M}, v{M}, v{SR+6}, v{SR+7}
v_max_f32 v{M}, v{M}, v{L}
v_mov_b32 v{L}, v{M}
{rnd(0)}
{rnd(1)}
v_permlane16_swap_b32 v{M}, v{L}
{rnd(2)}
{rnd(3)}
v_max_f32 v{M}, v{M}, v{L}
v_mov_b32 v{L}, v{M}
{rnd(4)}
{rnd(5)}
v_permlane32_swap_b32 v{M}, v{L}
{rnd(6)}
{rnd(7)}
v_max_f32 v{M}, v{M}, v{L}
{scl(0)}
v_cvt_pk_bf16_f32 v{M}, 0, v{M}
{scl(1)}
v_mul_f32 v{M}, s68, v{M}
{scl(2)}
v_cvt_pk_bf16_f32 v{M}, 0, v{M}
{scl(3)}
v_mul_f32 v{M}, s69, v{M}
""")
    for p in range(8): a(rnd(p))
    for p in range(4): a(f"v_pk_fma_f32 v[{SR+2*p}:{SR+1+2*p}], v[{SR+2*p}:{SR+1+2*p}], s[68:69], v[{M}:{M+1}] op_sel:[0,1,0] op_sel_hi:[1,1,0] neg_lo:[0,0,1] neg_hi:[0,0,1]")
    for p in range(8): a(f"v_exp_f32 v{SR+p}, v{SR+p}")
    if wod == 3: issue_upto(20, 20)
    for p in range(4): a(f"v_cvt_pk_bf16_f32 v{PR+p}, v{SR+2*p}, v{SR+1+2*p}")
    cm = [f"v_cndmask_b32 v{QR+4*dl+p}, 0, v{PR+p}, s[{58+2*dl}:{59+2*dl}]" for dl in range(4) for p in range(4)]
    a(f"""
v_pk_add_f32 v[{SR}:{SR+1}], v[{SR}:{SR+1}], v[{SR+2}:{SR+3}]
v_pk_add_f32 v[{SR+4}:{SR+5}], v[{SR+4}:{SR+5}], v[{SR+6}:{SR+7}]
v_pk_add_f32 v[{SR}:{SR+1}], v[{SR}:{SR+1}], v[{SR+4}:{SR+5}]
v_add_f32 v{L}, v{SR}, v{SR+1}
v_mov_b32 v{T}, v{L}
""")
    a("\n".join(cm[:4]))
    a(f"v_permlane16_swap_b32 v{L}, v{T}\n{cm[4]}\nv_add_f32 v{L}, v{L}, v{T}\nv_mov_b32 v{T}, v{L}")
    a("\n".join(cm[5:8]))
    a(f"v_permlane32_swap_b32 v{L}, v{T}\n{cm[8]}\nv_add_f32 v{L}, v{L}, v{T}")
    a(f"s_mov_b64 exec, 0x1111\nds_write_b64 v12, v[{M}:{L}] offset:{ML}")
    if bpre: a("s_mov_b64 exec, 1\nds_add_u32 v14, v13 offset:12")
    a("s_mov_b64 exec, -1")
    a("\n".join(cm[9:]))
    stamp(7)
    if wod == 4: issue_upto(20, 20)
    if wh: issue_upto(16 + wh, 20)
    wait_done(NV)
    stamp(5)
    if wod == 2: issue_upto(20, 20)
    def pvm(t):
        c = "0" if t % 4 == 0 else f"v[{16+4*(t//4)}:{19+4*(t//4)}]"
        return f"v_mfma_f32_16x16x32_bf16 v[{16+4*(t//4)}:{19+4*(t//4)}], v[{FR+4*t}:{FR+3+4*t}], v[{QR+4*(t%4)}:{QR+3+4*(t%4)}], {c}"
    if vp2:
        for t in (0, 4, 1, 5, 2, 6, 3, 7): a(pvm(t))
        a(f"s_nop 6\nds_write_b128 v11, v[16:19] offset:{OP}")
    else:
        for t in range(8):
            j = t // 2; sel = "s40" if t % 2 == 0 else "s41"
            a(f"v_perm_b32 v{FR+2+4*t}, v{VR+20+j}, v{VR+16+j}, {sel}\nv_perm_b32 v{FR+3+4*t}, v{VR+28+j}, v{VR+24+j}, {sel}")
            if t >= 1: a(pvm(t-1))
        a(f"ds_write_b128 v11, v[16:19] offset:{OP}")
        a(pvm(7))
        if wod == 7: issue_upto(20, 20); a("s_nop 0")
        else: a("s_nop 7")
    a(f"""
ds_write_b128 v11, v[20:23] offset:{OP+1024}
""")
    if wod == 5: issue_upto(20, 20)
    a("s_waitcnt lgkmcnt(0)")
    stamp(8)
    a("s_barrier")
    if wod == 9:
        if wk: a(f"s_sleep {wk}")
        issue_upto(20, 20)
    def woperm():
        a(f"s_waitcnt vmcnt({2 if opre else 0})")
        for t in range(8):
            j = t // 2; sel = "s40" if t % 2 == 0 else "s41"
            a(f"v_perm_b32 v{FR+2*t}, v{WR+4+j}, v{WR+j}, {sel}\nv_perm_b32 v{FR+1+2*t}, v{WR+12+j}, v{WR+8+j}, {sel}")
    if not opre: woperm()
    def dq(d, k): return f"v_add_f32_dpp v{d}, v{d}, v{d} quad_perm:{['[1,0,3,2]', '[2,3,0,1]'][k]} row_mask:0xf bank_mask:0xf"
    def opost(R):
        a(f"""
v_max_f32 v24, v{R+2}, v{R+6}
v_lshlrev_b32 v26, 16, v{R}
v_and_b32 v27, 0xffff0000, v{R}
v_max_f32_dpp v24, v24, v24 quad_perm:[1,0,3,2] row_mask:0xf bank_mask:0xf
v_lshlrev_b32 v28, 16, v{R+1}
v_and_b32 v29, 0xffff0000, v{R+1}
v_max_f32_dpp v24, v24, v24 quad_perm:[2,3,0,1] row_mask:0xf bank_mask:0xf
v_lshlrev_b32 v30, 16, v{R+4}
v_sub_f32 v18, v{R+2}, v24
v_sub_f32 v22, v{R+6}, v24
v_exp_f32 v18, v18
v_and_b32 v31, 0xffff0000, v{R+4}
v_exp_f32 v22, v22
v_lshlrev_b32 v32, 16, v{R+5}
v_and_b32 v33, 0xffff0000, v{R+5}
""")
    if om:
        mpoll("o", 2048, os0, od, False, FBO, [48, 56, 64][:om], 0, woperm); opost(16)
    elif on:
        ppoll("o", 2048, os0, od, False, FBO, [48, 56, 64, 72][:on], 0, opost)
    else:
        poll("o", 2048, os0, os_, False, FBO, woperm if opre else None); opost(16)
    stamp(9)
    a(f"""
v_add_f32 v24, v18, v22
v_pk_mul_f32 v[26:27], v[26:27], v[18:19] op_sel_hi:[1,0]
v_pk_mul_f32 v[28:29], v[28:29], v[18:19] op_sel_hi:[1,0]
v_add_f32_dpp v24, v24, v24 quad_perm:[1,0,3,2] row_mask:0xf bank_mask:0xf
v_pk_fma_f32 v[26:27], v[30:31], v[22:23], v[26:27] op_sel_hi:[1,0,1]
v_pk_fma_f32 v[28:29], v[32:33], v[22:23], v[28:29] op_sel_hi:[1,0,1]
v_add_f32_dpp v24, v24, v24 quad_perm:[2,3,0,1] row_mask:0xf bank_mask:0xf
""")
    a(dq(26, 0) + "\nv_rcp_f32 v24, v24")
    for e in (27, 28, 29): a(dq(e, 0))
    for e in (26, 27, 28, 29): a(dq(e, 1))
    a("""
v_pk_mul_f32 v[26:27], v[26:27], v[24:25] op_sel_hi:[1,0]
v_pk_mul_f32 v[28:29], v[28:29], v[24:25] op_sel_hi:[1,0]
v_cvt_pk_bf16_f32 v8, v26, v27
v_cvt_pk_bf16_f32 v9, v28, v29
""")
    for dl in range(4):
        for p in range(2):
            a(f"v_cndmask_b32 v{40+2*dl+p}, 0, v{8+p}, s[{58+2*dl}:{59+2*dl}]")
    for dl in (0, 2):
        for j in range(2):
            t = 4*j + dl
            c = "0" if dl == 0 else f"v[{128+4*j}:{131+4*j}]"
            a(f"v_mfma_f32_16x16x32_bf16 v[{128+4*j}:{131+4*j}], v[{40+2*dl}:{43+2*dl}], v[{FR+2*t}:{FR+3+2*t}], {c}")
    a(f"""
s_nop 6
ds_write_b128 v11, v[128:131] offset:{WP}
ds_write_b128 v11, v[132:135] offset:{WP+1024}
s_waitcnt lgkmcnt(0)
""")
    stamp(10)
    a("s_barrier")
    if stamps:
        stamp(11)
        flush_stamps(range(0, 12))
    a("s_endpgm")
    a(f"""L_C:
s_lshr_b32 s38, s32, 1
s_mul_i32 s38, s38, {XS}
v_lshl_add_u32 v7, v1, 4, s38
s_and_b32 s39, s47, 0x3ff
s_add_u32 s38, s38, s39
v_and_b32 v8, 7, v0
v_lshl_add_u32 v8, v8, 1, s38
s_mov_b32 s44, {f2u(1.0/512):#x}
s_mov_b32 s45, {f2u(1e-5):#x}
s_mov_b32 s48, 0x3f803f80
v_mov_b32 v24, 0
v_mov_b32 v25, 0
v_mov_b32 v26, 0
v_mov_b32 v27, 0
s_sleep 8
""")
    stamp(1)
    ldsspin("C")
    stamp(2)
    for i in range(4): a(f"ds_read_b128 v[{56+4*i}:{59+4*i}], v7 offset:{XN+256*i}")
    a(f"ds_read_u16 v28, v8 offset:{XN}")
    a("s_waitcnt lgkmcnt(0)")
    for i in range(16):
        a(f"v_dot2c_f32_bf16 v{24+(i%2)}, s48, v{56+i}\nv_dot2c_f32_bf16 v{26+(i%2)}, v{56+i}, v{56+i}")
    a("v_lshlrev_b32 v28, 16, v28\ns_nop 1")
    a("v_add_f32 v24, v24, v25\nv_add_f32 v26, v26, v27")
    for r in (8, 4, 2, 1): a("s_nop 0\n" + dpp("add", 24, r) + "\n" + dpp("add", 26, r))
    a("""
v_mul_f32 v24, s44, v24
v_mul_f32 v26, s44, v26
v_fma_f32 v26, -v24, v24, v26
v_max_f32 v26, 0, v26
""")
    bfround(24, 24); bfround(26, 26)
    a("v_add_f32 v26, s45, v26\nv_sub_f32 v28, v28, v24")
    bfround(26, 26)
    a("v_sqrt_f32 v26, v26")
    bfround(28, 28); bfround(26, 26)
    a("v_rcp_f32 v26, v26\ns_nop 0\nv_mul_f32 v28, v28, v26")
    bfround(28, 28)
    a("s_cmp_ge_u32 s36, 10\ns_cbranch_scc1 L_cw0\ns_waitcnt vmcnt(2)\ns_branch L_cw1\nL_cw0:\ns_waitcnt vmcnt(0)\nL_cw1:" if prewarm else "s_waitcnt vmcnt(0)")
    for (src, dst) in ((80, 32), (84, 40), (88, 48)):
        for p in range(4): a(f"v_lshlrev_b32 v{dst+2*p}, 16, v{src+p}\nv_and_b32 v{dst+1+2*p}, 0xffff0000, v{src+p}")
    for b in range(8): a(f"v_readlane_b32 s{64+b}, v28, {b}")
    a(f"s_mov_b32 s44, {f2u(C1):#x}\nv_mov_b32 v14, {f2u(C0):#x}")
    stamp(3)
    U, T, Z = 56, 64, 72
    a("s_mov_b32 s46, 0\nL_gate:\ns_mov_b32 m0, s46\ns_nop 0\ns_movrels_b32 s72, s64")
    for p in range(4): a(f"v_pk_fma_f32 v[{U+2*p}:{U+1+2*p}], s[72:73], v[{32+2*p}:{33+2*p}], v[{40+2*p}:{41+2*p}] op_sel_hi:[0,1,1]")
    for p in range(4): a(f"v_pk_mul_f32 v[{T+2*p}:{T+1+2*p}], v[{U+2*p}:{U+1+2*p}], v[{U+2*p}:{U+1+2*p}]")
    for p in range(4): a(f"v_pk_fma_f32 v[{T+2*p}:{T+1+2*p}], v[{T+2*p}:{T+1+2*p}], s[44:45], v[14:15] op_sel_hi:[1,0,0]")
    for p in range(4): a(f"v_pk_mul_f32 v[{T+2*p}:{T+1+2*p}], v[{T+2*p}:{T+1+2*p}], v[{U+2*p}:{U+1+2*p}]")
    for p in range(8): a(f"v_exp_f32 v{T+p}, v{T+p}")
    for p in range(4): a(f"v_pk_mul_f32 v[{U+2*p}:{U+1+2*p}], v[{U+2*p}:{U+1+2*p}], v[{48+2*p}:{49+2*p}]")
    for p in range(4): a(f"v_pk_add_f32 v[{T+2*p}:{T+1+2*p}], v[{T+2*p}:{T+1+2*p}], 1.0 op_sel_hi:[1,0]")
    for p in range(8): a(f"v_rcp_f32 v{T+p}, v{T+p}")
    a(f"v_pk_mul_f32 v[{Z}:{Z+1}], v[{U}:{U+1}], v[{T}:{T+1}]")
    for p in range(1, 4): a(f"v_pk_fma_f32 v[{Z}:{Z+1}], v[{U+2*p}:{U+1+2*p}], v[{T+2*p}:{T+1+2*p}], v[{Z}:{Z+1}]")
    a(f"s_set_gpr_idx_on s46, gpr_idx(DST)\ns_nop 0\nv_add_f32 v16, v{Z}, v{Z+1}\ns_set_gpr_idx_off")
    a("s_add_u32 s46, s46, 1\ns_cmp_lt_u32 s46, 8\ns_cbranch_scc1 L_gate")
    reduce8(16, 20)
    a(f"""
v_and_b32 v8, 1, v0
v_lshl_add_u32 v8, v6, 1, v8
v_lshlrev_b32 v8, 4, v8
s_lshl_b32 s38, s37, 2
v_add_u32 v9, s38, v8
ds_write_b32 v9, v16 offset:{GG}
s_waitcnt vmcnt(0) lgkmcnt(0)
""")
    stamp(4)
    if stamps: a("s_barrier\ns_barrier" + ("\ns_barrier" if qb else ""))
    flush_stamps(range(0, 5))
    a("L_end:\ns_endpgm")
    import re
    txt = re.sub(r"(s_sleep \d+)", r"\1 ; back-off while waiting for a hand-off (keeps polls off the memory/LDS queues)", a.text())
    return wrap(txt.replace("CODELEN", "L_end-L_C0-4"), 256, 768, lds, 160)

if __name__ == "__main__":
    import ast
    open("k6.s", "w").write(gen(stamps=False))
    for arg in sys.argv[1:]:
        name, kw = arg.split("=", 1)
        open(name + ".s", "w").write(gen(**eval("dict(" + kw + ")")))
```
